```python
import torch

def _softmax(x, axis=-1):
    return torch.softmax(x, dim=axis)

def _gelu(x):
    return torch.nn.functional.gelu(x, approximate='tanh')

def _silu(x):
    return torch.nn.functional.silu(x)

def _sigmoid(x):
    return torch.sigmoid(x)

def _layernorm(x, axis=-1, eps=1e-05):
    m = x.mean(dim=axis, keepdim=True)
    v = x.var(dim=axis, keepdim=True, unbiased=False)
    return (x - m) / torch.sqrt(v + eps)

def _scatter_add(tgt, idx, src, axis=0):
    return tgt.clone().index_add_(axis, idx, src)

def _segment_sum(src, seg, n):
    out = torch.zeros((n,) + src.shape[1:], dtype=src.dtype)
    return out.index_add_(0, seg, src)

def _pad(x, pw):
    flat = tuple((v for pair in reversed(pw) for v in pair))
    return torch.nn.functional.pad(x, flat)
kernel_name = 'adaLN_cond__spectral_gfnet__glu_gated_reglu__prompt'

def setup_inputs():

    _w = lambda a: (lambda t: t.to(torch.bfloat16) if t.is_floating_point() else t)(torch.as_tensor(a))

    def _A_setup():
        B, S, D = (1, 2048, 448)
        Df = D // 2 + 1
        return {'x': _w((lambda *s: torch.randn(*s, dtype=torch.bfloat16) * 0.05)(B, S, D)), 'w_r': _w((lambda *s: torch.randn(*s, dtype=torch.bfloat16) * 3.2)(S, Df) * 0.02), 'w_i': _w((lambda *s: torch.randn(*s, dtype=torch.bfloat16) * 3.2)(S, Df) * 0.02)}
    _A_in = _A_setup()

    def _B_setup():
        B, S, D, F = (1, 2048, 448, 1792)
        return {'x': _w((lambda *s: torch.randn(*s, dtype=torch.bfloat16) * 0.05)(B, S, D)), 'W_gate': _w((lambda *s: torch.randn(*s, dtype=torch.bfloat16) * 0.4)(D, F) * (2.0 / D) ** 0.5), 'W_up': _w((lambda *s: torch.randn(*s, dtype=torch.bfloat16) * 0.4)(D, F) * (2.0 / D) ** 0.5), 'W_down': _w((lambda *s: torch.randn(*s, dtype=torch.bfloat16) * 0.4)(F, D) * (1.0 / F) ** 0.5)}
    _B_in = _B_setup()
    return {'A_x': _A_in['x'], 'A_w_r': _A_in['w_r'], 'A_w_i': _A_in['w_i'], 'B_x': _B_in['x'], 'B_W_gate': _B_in['W_gate'], 'B_W_up': _B_in['W_up'], 'B_W_down': _B_in['W_down'], 'c': _w((lambda *s: torch.randn(*s, dtype=torch.bfloat16) * 0.1)(1, 448) * 8.0), 'w_mod': _w((lambda *s: torch.randn(*s, dtype=torch.bfloat16) * 0.1)(448, 6 * 448) * 448 ** (-0.5) * 8.0)}

def reference(A_x, A_w_r, A_w_i, B_x, B_W_gate, B_W_up, B_W_down, c, w_mod):

    def _A_ref(x, w_r, w_i):
        B, S, D = x.shape
        X = (lambda x, axes=(-2, -1): torch.fft.rfft2(x.float(), dim=axes))(x, axes=(-2, -1))
        W = w_r + 1j * w_i
        X = X * W
        y = (lambda x, s, axes=(-2, -1): torch.fft.irfft2(x, s=s, dim=axes).to(torch.bfloat16))(X, (S, D), axes=(-2, -1))
        return y

    def _B_ref(x, W_gate, W_up, W_down):
        gate = torch.einsum('bsd,df->bsf', x, W_gate)
        up = torch.einsum('bsd,df->bsf', x, W_up)
        gate = gate * (lambda x, dt: x.to(dt))(gate > 0, gate.dtype)
        h = gate * up
        return torch.einsum('bsf,fd->bsd', h, W_down)
    x = A_x
    mod = (_silu(c) @ w_mod).reshape(c.shape[0], 6, 1, -1)
    sa, ca, ga, sb, cb, gb = (mod[:, 0].clone(), mod[:, 1].clone(), mod[:, 2].clone(), mod[:, 3].clone(), mod[:, 4].clone(), mod[:, 5].clone())
    h = _layernorm(x, axis=-1) * (1 + ca) + sa
    x = x + ga * _A_ref(h, A_w_r, A_w_i)
    h = _layernorm(x, axis=-1) * (1 + cb) + sb
    x = x + gb * _B_ref(h, B_W_gate, B_W_up, B_W_down)
    return x
```

```python
import re

TRANS = ("v_exp_f32", "v_log_f32", "v_rcp_f32", "v_rsq_f32", "v_sqrt_f32", "v_sin_f32", "v_cos_f32", "v_rcp_iflag_f32")
REG_RE = re.compile(r"^(-|abs\(|-abs\(|neg\()?([vas])(\d+|\[(\d+):(\d+)\])\)?$")


def regs_of(tok):
    tok = tok.strip()
    if tok in ("vcc", "exec"):
        return [(tok, 0)]
    if tok in ("vcc_lo", "vcc_hi"):
        return [("vcc", 0)]
    if tok in ("exec_lo", "exec_hi"):
        return [("exec", 0)]
    if tok == "m0":
        return [("m0", 0)]
    m = REG_RE.match(tok)
    if not m:
        return []
    f = m.group(2)
    if m.group(4) is not None:
        return [(f, i) for i in range(int(m.group(4)), int(m.group(5)) + 1)]
    return [(f, int(m.group(3)))]


class Inst:
    __slots__ = ("text", "op", "kind", "rd", "wr", "dpp", "passes", "srcC", "srcAB", "wide_data", "ws", "lds_dma", "mods")

    def __init__(self, text):
        self.text = text
        body = text.split(";")[0].strip()
        parts = body.split(None, 1)
        self.op = op = parts[0]
        rest = parts[1] if len(parts) > 1 else ""
        toks, depth, cur = [], 0, ""
        for ch in rest:
            if ch in "[(":
                depth += 1
            elif ch in "])":
                depth -= 1
            if ch == "," and depth == 0:
                toks.append(cur.strip())
                cur = ""
            else:
                cur += ch
        if cur.strip():
            toks.append(cur.strip())
        mods = ""
        if toks:
            last = toks[-1].split(None, 1)
            toks[-1] = last[0]
            mods = last[1] if len(last) > 1 else ""
        self.mods = mods
        R = [regs_of(t) for t in toks]
        flat = lambda l: [x for y in l for x in y]
        self.rd, self.wr = set(), set()
        self.dpp = "_dpp" in op or "quad_perm" in mods or "row_" in mods
        self.passes = 0
        self.srcC, self.srcAB, self.wide_data = set(), set(), set()
        self.ws = 1
        self.lds_dma = False
        if op.startswith("v_mfma"):
            self.kind = "mfma"
            self.passes = 8 if "32x32" in op else 4
            self.wr = set(R[0])
            self.srcAB = set(R[1] + R[2])
            self.srcC = set(R[3])
            self.rd = self.srcAB | self.srcC
        elif op.startswith("v_cmp"):
            self.kind = "valu"
            self.wr = set(R[0])
            self.rd = set(flat(R[1:]))
        elif op.startswith("v_permlane") and "swap" in op:
            self.kind = "valu"
            self.wr = set(R[0] + R[1])
            self.rd = set(R[0] + R[1])
        elif op.startswith("v_nop"):
            self.kind = "other"
        elif op.startswith("v_"):
            self.kind = "trans" if op.replace("_e32", "").replace("_e64", "") in TRANS else "valu"
            self.wr = set(R[0])
            k = 1
            if "_co_" in op:
                self.wr |= set(R[1])
                k = 2
            self.rd = set(flat(R[k:]))
            if op.startswith(("v_fmac", "v_mac", "v_dot2c", "v_pk_fmac", "v_writelane")) or self.dpp:
                self.rd |= set(R[0])
            if op.startswith("v_cndmask") and len(toks) == 3:
                self.rd.add(("vcc", 0))
        elif op.startswith(("buffer_", "global_")):
            self.kind = "vmem"
            if op in ("buffer_wbl2", "buffer_inv"):
                pass
            elif " lds" in (" " + mods) or "_lds_" in op:
                self.lds_dma = True
                self.rd = set(flat(R)) | {("m0", 0)}
            elif "_load" in op:
                self.wr = set(R[0])
                self.rd = set(flat(R[1:]))
                if "d16" in op:
                    self.rd |= set(R[0])
            elif "_atomic" in op:
                self.rd = set(flat(R))
                if "sc0" in mods:
                    self.wr = set(R[0])
            else:
                self.rd = set(flat(R))
                if "x4" in op or "x3" in op:
                    self.wide_data = set(R[0] if op.startswith("buffer_") else R[1])
        elif op.startswith("ds_"):
            self.kind = "ds"
            if op.startswith(("ds_read", "ds_bpermute", "ds_permute", "ds_swizzle")) or "_rtn" in op:
                self.wr = set(R[0])
                self.rd = set(flat(R[1:]))
            else:
                self.rd = set(flat(R))
        elif op.startswith(("s_load", "s_buffer_load", "s_memtime", "s_memrealtime")):
            self.kind = "smem"
            self.wr = set(R[0])
            self.rd = set(flat(R[1:]))
        elif op == "s_nop":
            self.kind = "other"
            self.ws = int(toks[0], 0) + 1
        elif op in ("s_waitcnt", "s_barrier", "s_endpgm", "s_sleep", "s_setprio") or op.startswith(("s_branch", "s_cbranch")):
            self.kind = "other"
        elif op.startswith("s_cmp") or op.startswith("s_bitcmp"):
            self.kind = "salu"
            self.rd = set(flat(R))
        elif op.startswith("s_"):
            self.kind = "salu"
            self.wr = set(R[0])
            self.rd = set(flat(R[1:]))
            if "saveexec" in op:
                self.wr.add(("exec", 0))
            if op in ("s_addk_i32", "s_mulk_i32"):
                self.rd |= set(R[0])
        else:
            raise ValueError("unknown op " + text)


def is_v(r):
    return r[0] in "va" and len(r[0]) == 1


def is_s(r):
    return r[0] == "s" or r[0] == "vcc"


def need_ws(p, c):
    n = 0
    pval = p.kind in ("valu", "trans")
    cval = c.kind in ("valu", "trans")
    if pval:
        wv = {r for r in p.wr if is_v(r)}
        wsg = {r for r in p.wr if is_s(r)}
        if c.kind == "mfma" and wv & c.rd:
            n = max(n, 2)
        if cval and wsg & c.rd:
            n = max(n, 4 if c.op.startswith(("v_readlane", "v_writelane")) else 2)
        if c.kind == "vmem" and wsg & c.rd:
            n = max(n, 5)
        if c.op.startswith(("v_readlane", "v_readfirstlane")) and wv & c.rd:
            n = max(n, 1)
        if cval and c.dpp and wv & c.rd:
            n = max(n, 2)
        if c.op.startswith("v_permlane") and wv & c.rd:
            n = max(n, 2)
        if p.kind == "trans" and c.kind == "valu" and wv & (c.rd | c.wr):
            n = max(n, 1)
        if p.kind == "trans" and c.kind in ("vmem", "ds") and wv & c.rd:
            n = max(n, 1)
        if p.op.startswith("v_dot"):
            if wv & (c.rd | c.wr) and c.op != p.op:
                n = max(n, 3)
        if c.kind == "salu" and wsg & c.rd:
            n = max(n, 1)
    if p.kind == "mfma":
        big = {4: 8, 8: 12}[p.passes]
        if c.kind == "mfma":
            if p.wr & c.srcAB:
                n = max(n, big)
            if p.wr & c.srcC:
                if not (p.wr == c.srcC and p.op == c.op):
                    n = max(n, big - 2)
            elif p.wr & c.wr and not (p.wr == c.wr and p.op == c.op):
                n = max(n, big - 2)
        elif cval:
            if p.wr & (c.rd | c.wr):
                n = max(n, big)
            if p.srcC & c.wr:
                n = max(n, {4: 3, 8: 7}[p.passes])
        elif c.kind in ("vmem", "ds"):
            if p.wr & (c.rd | c.wr):
                n = max(n, big)
    if p.kind == "vmem" and p.wide_data:
        if p.wide_data & c.wr:
            n = max(n, 2 if (cval or c.kind == "mfma") else 1)
    if p.kind == "salu" and ("m0", 0) in p.wr and (c.lds_dma or "addtid" in c.op):
        n = max(n, 1)
    return n


class Asm:
    def __init__(self):
        self.out = []
        self.hist = []
        self.vm = []
        self.lg = []
        self.vm_issued = 0
        self.lg_issued = 0
        self.nops = 0
        self.maxv = -1
        self.maxa = -1
        self.maxs = -1

    def raw(self, text):
        self.out.append(text)

    def comment(self, text):
        self.out.append("    ; " + text)

    def reset(self):
        self.hist, self.vm, self.lg = [], [], []
        self.maxv = self.maxa = self.maxs = -1

    def label(self, name):
        self.out.append(name + ":")

    def _emit(self, ins):
        self.out.append("    " + ins.text)
        self.hist.append(ins)
        if len(self.hist) > 24:
            self.hist.pop(0)

    def wait_vm_n(self, n):
        if len(self.vm) > n:
            assert n <= 63
            self._emit(Inst(f"s_waitcnt vmcnt({n})"))
            self.vm = self.vm[len(self.vm) - n:] if n else []

    def wait_lg_n(self, n):
        if len(self.lg) > n:
            if any(k == "smem" for k, _ in self.lg):
                n = 0
            n = min(n, 15)
            self._emit(Inst(f"s_waitcnt lgkmcnt({n})"))
            self.lg = self.lg[len(self.lg) - n:] if n else []

    def wait_vm(self, handle):
        self.wait_vm_n(self.vm_issued - 1 - handle)

    def wait_lg(self, handle):
        self.wait_lg_n(self.lg_issued - 1 - handle)

    def wait_all(self):
        self.wait_vm_n(0)
        self.wait_lg_n(0)

    def __call__(self, text):
        for line in text.strip().split("\n"):
            line = line.strip()
            if not line or line.startswith(";"):
                continue
            h = self._one(line)
        return h

    def _one(self, text):
        ins = Inst(text)
        touched = ins.rd | ins.wr
        for f, i in touched:
            if f == "v":
                self.maxv = max(self.maxv, i)
            elif f == "a":
                self.maxa = max(self.maxa, i)
            elif f == "s":
                self.maxs = max(self.maxs, i)
        if ins.op == "s_waitcnt":
            m = re.search(r"vmcnt\((\d+)\)", text)
            if m:
                n = int(m.group(1))
                self.vm = self.vm[max(0, len(self.vm) - n):] if n else []
            m = re.search(r"lgkmcnt\((\d+)\)", text)
            if m:
                n = int(m.group(1))
                if n == 0 or not any(k == "smem" for k, _ in self.lg):
                    self.lg = self.lg[max(0, len(self.lg) - n):] if n else []
            self._emit(ins)
            return None
        for idx in range(len(self.vm) - 1, -1, -1):
            if self.vm[idx] & touched:
                self.wait_vm_n(len(self.vm) - 1 - idx)
                break
        for idx in range(len(self.lg) - 1, -1, -1):
            if self.lg[idx][1] & touched:
                self.wait_lg_n(len(self.lg) - 1 - idx)
                break
        if ins.kind == "vmem" and len(self.vm) >= 63:
            self.wait_vm_n(62)
        need, dist = 0, 0
        for p in reversed(self.hist):
            need = max(need, need_ws(p, ins) - dist)
            dist += p.ws
            if dist > 20:
                break
        while need > 0:
            k = min(need, 16)
            self._emit(Inst(f"s_nop {k - 1}"))
            self.nops += k
            need -= k
        self._emit(ins)
        if ins.kind == "vmem":
            self.vm.append(set(ins.wr))
            self.vm_issued += 1
            return self.vm_issued - 1
        if ins.kind in ("ds", "smem"):
            self.lg.append((ins.kind, set(ins.wr)))
            self.lg_issued += 1
            return self.lg_issued - 1
        return None

    def pad(self, n=12):
        self._emit(Inst(f"s_nop {n - 1}"))

    def text(self):
        return "\n".join(self.out) + "\n"


def vr(base, n=1, f="v"):
    return f"{f}{base}" if n == 1 else f"{f}[{base}:{base + n - 1}]"


def f2u(x):
    import struct
    return struct.unpack("<I", struct.pack("<f", x))[0]


def fl(x):
    return hex(f2u(x))
```

```python
import math
from asmgen import Asm, vr, fl, f2u
from gen import *

K2_LDS = 16384
K3_LDS = 160 * 1024


def neg(x):
    return x[1:] if x.startswith("-") else "-" + x


def k2(a, ts=False):
    kstart(a, "k2_kernel")
    st = Stamp(a, ts, 1)
    st()
    a("s_cmp_ge_u32 s2, 256")
    a("s_cbranch_scc1 L_k2_end")
    a("s_load_dwordx2 s[6:7], s[0:1], 88")
    a("s_load_dwordx4 s[20:23], s[0:1], 8")
    a("v_lshrrev_b32 v1, 6, v0")
    a("v_and_b32 v2, 63, v0")
    a("v_readfirstlane_b32 s16, v1")
    a("v_and_b32 v7, 15, v2")
    a("v_lshrrev_b32 v8, 4, v2")
    a("s_and_b32 s17, s2, 7")
    a("s_lshr_b32 s18, s2, 3")
    a("s_and_b32 s19, s18, 3")
    a("s_bfe_u32 s24, s18, 0x10002")
    a("s_lshr_b32 s25, s18, 3")
    a("s_lshl_b32 s26, s19, 3")
    a("s_add_u32 s26, s26, s17")
    a("s_sub_u32 s27, 64, s26")
    a("s_cmp_eq_u32 s26, 0")
    a("s_cselect_b32 s27, 32, s27")
    a("s_cmp_eq_u32 s24, 0")
    a("s_cselect_b32 s27, s26, s27")
    a("v_lshrrev_b32 v9, 1, v7")
    a("v_lshl_add_u32 v10, v8, 6, v9")
    a("s_lshl_b32 s28, s16, 4")
    a("v_add_u32 v10, s28, v10")
    a("v_add_u32 v11, 4, v8")
    a("v_min_u32 v11, 6, v11")
    a("v_lshl_add_u32 v12, v11, 6, v9")
    a("v_add_u32 v12, s28, v12")
    a("v_lshlrev_b32 v13, 2, v10")
    a("v_lshlrev_b32 v14, 2, v12")
    a("v_lshrrev_b32 v15, 2, v7")
    a("v_lshlrev_b32 v15, 7, v15")
    a("v_and_b32 v16, 3, v7")
    a("v_lshl_add_u32 v15, v16, 4, v15")
    for dst, j in ((17, 8), (18, 11)):
        a(f"v_lshrrev_b32 v16, 1, v{j}")
        a(f"v_lshl_add_u32 v{dst}, v16, 14, v15")
        a(f"v_and_b32 v16, 1, v{j}")
        a(f"v_lshl_add_u32 v{dst}, v16, 6, v{dst}")
    a("s_lshl_b32 s29, s26, 16")
    a("s_lshl_b32 s30, s16, 12")
    a("s_add_u32 s29, s29, s30")
    a(f"s_add_u32 s29, s29, {NWS}")
    a(f"s_mov_b32 s30, {MOD}")
    srd(a, 12, 6, WS_BYTES)
    CA, SA = 208, 212
    for jh in range(2):
        for tau in range(2):
            a(f"buffer_load_dword v{CA+jh*2+tau}, v{13+jh}, s[12:15], s30 offen offset:{448*4+tau*32}")
    for jh in range(2):
        for tau in range(2):
            a(f"buffer_load_dword v{SA+jh*2+tau}, v{13+jh}, s[12:15], s30 offen offset:{tau*32}")
    DB = 64
    db = lambda bt, aql, jh: DB + ((aql * 2 + jh) * 2 + bt) * 4
    for aql in range(4):
        for jh in range(2):
            for bt in range(2):
                a(f"buffer_load_dwordx4 {vr(db(bt,aql,jh),4)}, v{17+jh}, s[12:15], s29 offen offset:{aql*1024+bt*512}")
    WR, WI = 192, 200
    for k in range(16):
        a(f"v_mov_b32 v{WR+k}, 0")
    a("v_add_u32 v19, s28, v7")
    a("v_mul_u32_u24 v20, 7, v19")
    a("v_add_u32 v20, s25, v20")
    a("v_sub_u32 v21, 448, v20")
    a("v_cmp_lt_u32 vcc, 224, v20")
    a("v_cndmask_b32 v20, v20, v21, vcc")
    a("v_lshlrev_b32 v20, 1, v20")
    a("v_lshlrev_b32 v21, 8, v8")
    a("v_add_u32 v21, s27, v21")
    a("v_sub_u32 v22, 0, v21")
    a("v_cndmask_b32 v21, v21, v22, vcc")
    a("v_mov_b32 v22, 64")
    a("v_mov_b32 v23, -64")
    a("v_cndmask_b32 v22, v22, v23, vcc")
    a("v_mov_b32 v23, 0x80000000")
    a("v_cndmask_b32 v23, 0, v23, vcc")
    srd(a, 8, 20, W_BYTES)
    srd(a, 36, 22, W_BYTES)
    a("s_movk_i32 s31, 450")
    for e in range(8):
        K = 16 * (e >> 2) + (e & 3)
        t = 24 + (e & 1)
        a(f"v_mad_i32_i24 v{t}, v22, {K}, v21")
        a(f"v_and_b32 v{t}, 0x7ff, v{t}")
        a(f"v_mad_u32_u24 v{t}, v{t}, s31, v20")
        a(f"buffer_load_short_d16_hi v{WR+e}, v{t}, s[8:11], 0 offen")
        a(f"buffer_load_short_d16_hi v{WI+e}, v{t}, s[36:39], 0 offen")
    a("v_cvt_f32_u32 v24, s25")
    a(f"v_mul_f32 v24, {fl(-1/448)}, v24")
    a("v_cvt_f32_u32 v25, v10")
    a("v_and_b32 v26, 1, v7")
    a("v_cvt_f32_u32 v26, v26")
    a(f"v_mul_f32 v26, {fl(-0.25)}, v26")
    a("v_fma_f32 v25, v25, v24, v26")
    a(f"s_mov_b32 s32, {fl(0.25)}")
    a(f"s_mov_b32 s33, {fl(-0.25)}")
    a("s_cmp_eq_u32 s24, 0")
    a("s_cselect_b32 s32, s32, s33")
    a("s_cmp_eq_u32 s27, 32")
    a("s_cselect_b32 s32, 0, s32")
    a("s_cselect_b32 s33, 0xffff0000, -1")
    a("s_cmp_eq_u32 s27, 0")
    a("s_cselect_b32 s33, 0xffff, s33")
    a(f"s_cselect_b32 s34, {fl(64.0)}, 0")
    T0, T1 = 216, 220
    for jh in range(2):
        for tau in range(2):
            i = jh * 2 + tau
            a(f"v_fmamk_f32 v26, v24, {fl(float(8*tau+256*jh))}, v25")
            a(f"v_add_f32 v27, s32, v26")
            a(f"v_cos_f32 v{T0+i}, v26")
            a(f"v_cos_f32 v{T1+i}, v27")
    for k in range(8):
        m = 0x00030003 << (2 * k)
        a(f"s_mov_b32 s{40+2*k}, {hex(m)}")
        a(f"s_mov_b32 s{41+2*k}, {hex(m)}")
    a("s_mov_b32 s56, -1")
    a("s_mov_b32 s57, 0xffff")
    for tau in range(2):
        a(f"v_cndmask_b32 v{T0+2+tau}, 0, v{T0+2+tau}, s[56:57]")
        a(f"v_cndmask_b32 v{T1+2+tau}, 0, v{T1+2+tau}, s[56:57]")
    PW = 224
    RS = 228
    for i in range(4):
        a(f"v_mul_f32 v26, v{CA+i}, v{T0+i}")
        a(f"v_mul_f32 v27, v{CA+i}, v{T1+i}")
        a(f"v_cvt_pk_bf16_f32 v{PW+i}, v26, v27")
        a(f"v_and_b32 v{PW+i}, s33, v{PW+i}")
    RM = 32
    rm = lambda tau, z, jh: RM + ((tau * 2 + z) * 2 + jh) * 4
    for tau in range(2):
        for z in range(2):
            for jh in range(2):
                for r in range(4):
                    k = 4 * z + r
                    a(f"v_cndmask_b32 v{rm(tau,z,jh)+r}, 0, v{PW+jh*2+tau}, s[{40+2*k}:{41+2*k}]")
    for tau in range(2):
        a(f"v_mul_f32 v26, v{SA+tau}, v{T0+tau}")
        a(f"v_mul_f32 v27, v{SA+2+tau}, v{T0+2+tau}")
        a("v_mul_f32 v26, s34, v26")
        a("v_mul_f32 v27, s34, v27")
        a(f"v_cvt_pk_bf16_f32 v{RS+tau*4}, v26, v27")
        a(f"v_lshlrev_b32 v28, 16, v{RS+tau*4}")
        a(f"v_and_b32 v29, 0xffff0000, v{RS+tau*4}")
        a("v_sub_f32 v26, v26, v28")
        a("v_sub_f32 v27, v27, v29")
        a(f"v_cvt_pk_bf16_f32 v{RS+tau*4+1}, v26, v27")
        a(f"v_mov_b32 v{RS+tau*4+2}, 0")
        a(f"v_mov_b32 v{RS+tau*4+3}, 0")
    ONE = 236
    for r in range(4):
        a(f"v_mov_b32 v{ONE+r}, 0x3f803f80")
    CI = 240
    for tau in range(2):
        a(f"{MFMA} {vr(CI+tau*4,4)}, {vr(RS+tau*4,4)}, {vr(ONE,4)}, 0")
    MRE, MIM = 128, 144
    a("v_cvt_f32_u32 v24, v19")
    a(f"v_mul_f32 v24, {fl(1/64)}, v24")
    a("v_cvt_f32_u32 v30, v8")
    a("v_mul_f32 v30, 4.0, v30")
    a("v_mul_f32 v25, v30, v24")
    a("v_and_b32 v31, 1, v2")
    a("v_mul_u32_u24 v31, 0x8000, v31")
    a("v_lshl_or_b32 v31, v31, 16, v31")
    for ks in range(2):
        for e in range(4):
            a(f"v_fmamk_f32 v26, v24, {fl(float(16*ks+e))}, v25")
            a("v_cos_f32 v27, v26")
            a("v_sin_f32 v28, v26")
            a(f"v_cvt_pk_bf16_f32 v{MRE+ks*4+e}, v27, v28")
            a(f"v_cvt_pk_bf16_f32 v{MIM+ks*4+e}, -v28, v27")
            a(f"v_xor_b32 v{MRE+8+ks*4+e}, v{MRE+ks*4+e}, v31")
            a(f"v_xor_b32 v{MIM+8+ks*4+e}, v{MIM+ks*4+e}, v31")
    FC, FS, IC, IS = 160, 168, 176, 184
    a("v_lshlrev_b32 v24, 6, v7")
    a("v_add_u32 v24, s27, v24")
    a("v_cvt_f32_u32 v24, v24")
    a(f"v_mul_f32 v24, {fl(1/2048)}, v24")
    a("v_mul_f32 v25, v30, v24")
    a("s_mov_b32 s35, 0x80000000")
    for d in range(4):
        for hlf in range(2):
            e = 2 * d + hlf
            K = 16 * (e >> 2) + (e & 3)
            a(f"v_fmamk_f32 v26, v24, {fl(float(K))}, v25")
            a(f"v_cos_f32 v{216+hlf}, v26")
            a(f"v_sin_f32 v{218+hlf}, v26")
        a(f"v_cvt_pk_bf16_f32 v{FC+d}, v216, v217")
        a(f"v_cvt_pk_bf16_f32 v{FS+d}, v218, v219")
        a(f"v_xor_b32 v{FC+4+d}, s35, v{FC+d}")
        a(f"v_xor_b32 v{FS+4+d}, s35, v{FS+d}")
    a("v_cvt_f32_u32 v26, s27")
    a(f"v_fmamk_f32 v26, v30, {fl(64.0)}, v26")
    for bt in range(2):
        a(f"v_add_u32 v24, {16*bt}, v7")
        a("v_cvt_f32_u32 v24, v24")
        a(f"v_mul_f32 v24, {fl(1/2048)}, v24")
        a("v_mul_f32 v25, v24, v26")
        for d in range(2):
            for hlf in range(2):
                a(f"v_fmamk_f32 v27, v24, {fl(float(64*(2*d+hlf)))}, v25")
                a(f"v_cos_f32 v{216+hlf}, v27")
                a(f"v_sin_f32 v{218+hlf}, v27")
            a(f"v_cvt_pk_bf16_f32 v{IC+bt*4+d}, v216, v217")
            a(f"v_cvt_pk_bf16_f32 v{IS+bt*4+d}, v218, v219")
            a(f"v_xor_b32 v{IC+bt*4+2+d}, v{IC+bt*4+d}, v31")
            a(f"v_xor_b32 v{IS+bt*4+2+d}, v{IS+bt*4+d}, v31")
    a("v_lshlrev_b32 v9, 4, v2")
    a("s_lshl_b32 s30, s16, 11")
    a("v_add_u32 v10, s30, v9")
    a("v_lshrrev_b32 v11, 1, v8")
    a("v_lshl_add_u32 v11, v11, 4, v7")
    a("v_lshlrev_b32 v11, 4, v11")
    a("v_and_b32 v12, 1, v8")
    a("v_lshl_add_u32 v11, v12, 3, v11")
    a("v_add_u32 v11, s30, v11")
    a("v_lshlrev_b32 v12, 16, v7")
    a("v_lshl_add_u32 v12, v8, 12, v12")
    a("s_lshl_b32 s30, s16, 14")
    a("s_lshl_b32 s31, s17, 9")
    a("s_add_u32 s30, s30, s31")
    a("s_lshl_b32 s31, s25, 7")
    a("s_add_u32 s30, s30, s31")
    a("s_lshl_b32 s31, s19, 5")
    a("s_add_u32 s30, s30, s31")
    a("s_lshl_b32 s31, s24, 4")
    a("s_add_u32 s30, s30, s31")
    a(f"s_add_u32 s30, s30, {ZWS}")
    a(f"s_add_u32 s31, s30, {16*65536}")
    st()
    AC = 208
    for tau in range(2):
        for z in range(2):
            for jh in range(2):
                for bt in range(2):
                    d = vr(AC + (tau * 2 + bt) * 4, 4)
                    c = vr(CI + tau * 4, 4) if (z == 0 and jh == 0) else d
                    a(f"{MFMA} {d}, {vr(rm(tau,z,jh),4)}, {vr(db(bt,2*tau+z,jh),4)}, {c}")
    st()
    for tau in range(2):
        for bt in range(2):
            s_ = AC + (tau * 2 + bt) * 4
            o = 224 + (tau * 2 + bt) * 2
            a(f"v_cvt_pk_bf16_f32 v{o}, v{s_}, v{s_+1}")
            a(f"v_cvt_pk_bf16_f32 v{o+1}, v{s_+2}, v{s_+3}")
            a(f"ds_write_b64 v11, {vr(o,2)} offset:{bt*1024+tau*512}")
    for e in range(8):
        a(f"v_xor_b32 v{WI+e}, v{WI+e}, v23")
    a("s_waitcnt lgkmcnt(0)")
    a("s_barrier")
    TA = 64
    for ks in range(4):
        for bt in range(2):
            a(f"ds_read_b128 {vr(TA+(ks*2+bt)*4,4)}, v9 offset:{(ks*2+bt)*1024}")
    X1 = 96
    for ks in range(4):
        for bt in range(2):
            for ri, M in enumerate((MRE, MIM)):
                d = vr(X1 + (ri * 2 + bt) * 4, 4)
                a(f"{MFMA} {d}, {vr(TA+(ks*2+bt)*4,4)}, {vr(M+ks*4,4)}, {d if ks else 0}")
    BRE, BIM, BN = 112, 116, 120
    for k in range(4):
        a(f"v_cvt_pk_bf16_f32 v{BRE+k}, v{X1+2*k}, v{X1+2*k+1}")
    for k in range(4):
        a(f"v_cvt_pk_bf16_f32 v{BIM+k}, v{X1+8+2*k}, v{X1+8+2*k+1}")
    for k in range(4):
        a(f"v_cvt_pk_bf16_f32 v{BN+k}, -v{X1+2*k}, -v{X1+2*k+1}")
    X2 = 32
    for ut in range(2):
        a(f"{MFMA} {vr(X2+ut*4,4)}, {vr(FC+ut*4,4)}, {vr(BRE,4)}, 0")
        a(f"{MFMA} {vr(X2+8+ut*4,4)}, {vr(FC+ut*4,4)}, {vr(BIM,4)}, 0")
    for ut in range(2):
        a(f"{MFMA} {vr(X2+ut*4,4)}, {vr(FS+ut*4,4)}, {vr(BIM,4)}, {vr(X2+ut*4,4)}")
        a(f"{MFMA} {vr(X2+8+ut*4,4)}, {vr(FS+ut*4,4)}, {vr(BN,4)}, {vr(X2+8+ut*4,4)}")
    YR, YI = 48, 56
    for e in range(8):
        a(f"v_mul_f32 v{YR+e}, v{X2+e}, v{WR+e}")
        a(f"v_mul_f32 v{YI+e}, v{X2+e}, v{WI+e}")
        a(f"v_fma_f32 v{YR+e}, -v{X2+8+e}, v{WI+e}, v{YR+e}")
        a(f"v_fmac_f32 v{YI+e}, v{X2+8+e}, v{WR+e}")
    for k in range(4):
        a(f"v_cvt_pk_bf16_f32 v{BRE+k}, v{YR+2*k}, v{YR+2*k+1}")
    for k in range(4):
        a(f"v_cvt_pk_bf16_f32 v{BIM+k}, v{YI+2*k}, v{YI+2*k+1}")
    for k in range(4):
        a(f"v_cvt_pk_bf16_f32 v{BN+k}, -v{YI+2*k}, -v{YI+2*k+1}")
    Y1 = 96
    for bt in range(2):
        a(f"{MFMA} {vr(Y1+bt*4,4)}, {vr(BRE,4)}, {vr(IC+bt*4,4)}, 0")
        a(f"{MFMA} {vr(Y1+8+bt*4,4)}, {vr(BRE,4)}, {vr(IS+bt*4,4)}, 0")
    for bt in range(2):
        a(f"{MFMA} {vr(Y1+8+bt*4,4)}, {vr(BIM,4)}, {vr(IC+bt*4,4)}, {vr(Y1+8+bt*4,4)}")
        a(f"{MFMA} {vr(Y1+bt*4,4)}, {vr(BN,4)}, {vr(IS+bt*4,4)}, {vr(Y1+bt*4,4)}")
    for bt in range(2):
        for r in range(4):
            a(f"v_cvt_pk_bf16_f32 v{224+bt*4+r}, v{Y1+bt*4+r}, -v{Y1+8+bt*4+r}")
        a(f"ds_write_b128 v10, {vr(224+bt*4,4)} offset:{8192+bt*1024}")
    a("s_waitcnt lgkmcnt(0)")
    a("s_barrier")
    for ks in range(4):
        for bt in range(2):
            a(f"ds_read_b128 {vr(TA+(ks*2+bt)*4,4)}, v9 offset:{8192+(ks*2+bt)*1024}")
    ZC = 32
    for bt in range(2):
        for ks in range(4):
            for ri, M in enumerate((MRE, MIM)):
                d = vr(ZC + (ri * 2 + bt) * 4, 4)
                a(f"{MFMA} {d}, {vr(M+ks*4,4)}, {vr(TA+(ks*2+bt)*4,4)}, {d if ks else 0}")
    for bt in range(2):
        for r in range(4):
            a(f"v_cvt_pk_bf16_f32 v{224+bt*4+r}, v{ZC+bt*4+r}, -v{ZC+8+bt*4+r}")
        a(f"buffer_store_dwordx4 {vr(224+bt*4,4)}, v12, s[12:15], s{30+bt} offen")
    st()
    st.flush(16, 12, "k2")
    a.label("L_k2_end")
    a("s_endpgm")
    return kdesc("k2_kernel", a.maxv + 1, 0, 96)


SPIN_MAX = 200000


def poll(a, tag, voff, target, tmp):
    a(f"s_mov_b32 s77, 0")
    a.label(f"L_poll_{tag}")
    a.raw(f"    buffer_load_dword v{tmp}, v{voff}, s[12:15], 0 offen sc1")
    a("s_add_u32 s77, s77, 1")
    a("s_waitcnt vmcnt(0)")
    a(f"v_readfirstlane_b32 s78, v{tmp}")
    a(f"s_cmp_gt_u32 s77, {SPIN_MAX}")
    a(f"s_cbranch_scc1 L_pdone_{tag}")
    a(f"s_cmp_lt_u32 s78, {target}")
    a(f"s_cbranch_scc1 L_poll_{tag}")
    a.label(f"L_pdone_{tag}")


def interleave(a, main, fill, start=0):
    n = len(main) - start
    done = 0
    for i, m in enumerate(main):
        m() if callable(m) else a(m)
        if i >= start:
            want = (len(fill) * (i - start + 1) + n - 1) // n
            while done < want:
                f = fill[done]
                f() if callable(f) else a(f)
                done += 1


L_AUX = 8 * RT
L_PST = L_AUX + 16384
L_RST = L_PST + 4096
CNT_C = FLAGS
CNT_D = FLAGS + 4096


def k3(a, ts=False):
    kstart(a, "k3_kernel")
    st = Stamp(a, ts, 2)
    st()
    a("s_cmp_ge_u32 s2, 256")
    a("s_cbranch_scc1 L_k3_end")
    a("s_load_dwordx2 s[6:7], s[0:1], 88")
    a("s_load_dwordx2 s[4:5], s[0:1], 0")
    a("s_load_dwordx2 s[20:21], s[0:1], 72")
    a("v_lshrrev_b32 v1, 6, v0")
    a("v_and_b32 v2, 63, v0")
    a("v_readfirstlane_b32 s16, v1")
    a("v_and_b32 v7, 15, v2")
    a("v_lshrrev_b32 v8, 4, v2")
    a("v_lshlrev_b32 v9, 4, v2")
    a("s_and_b32 s17, s2, 7")
    a("s_lshr_b32 s18, s2, 3")
    a("s_and_b32 s19, s18, 3")
    a("s_lshl_b32 s22, s17, 2")
    a("s_add_u32 s22, s22, s19")
    a("s_lshr_b32 s23, s18, 2")
    a("s_lshr_b32 s24, s17, 1")
    a("s_lshl_b32 s24, s24, 2")
    a("s_add_u32 s24, s24, s19")
    a("s_and_b32 s25, s17, 1")
    a("s_mul_i32 s26, s25, 7")
    a("s_add_u32 s26, s26, s23")
    a("s_min_u32 s26, s26, 13")
    a("v_lshrrev_b32 v10, 3, v7")
    a("v_lshlrev_b32 v10, 10, v10")
    a("v_lshl_add_u32 v10, v8, 7, v10")
    a("v_and_b32 v11, 7, v7")
    a("v_lshl_add_u32 v10, v11, 4, v10")
    a("s_lshl_b32 s27, s22, 16")
    a("s_lshl_b32 s28, s23, 13")
    a("s_add_u32 s27, s27, s28")
    a(f"s_add_u32 s27, s27, {ZWS}")
    a("s_add_u32 s28, s27, 4096")
    srd(a, 12, 6, WS_BYTES)
    ZD = 64
    zd = lambda z, nu: ZD + (z * 4 + nu) * 4
    for nu in range(4):
        for z in range(2):
            a(f"buffer_load_dwordx4 {vr(zd(z,nu),4)}, v10, s[12:15], s{27+z} offen offset:{(nu>>1)*512+(nu&1)*2048}")
    XV, GA_, CB_ = 208, 216, 224
    for k in range(24):
        a(f"v_mov_b32 v{XV+k}, 0")
    a("v_lshrrev_b32 v12, 1, v8")
    a("s_lshl_b32 s29, s16, 1")
    a("v_add_u32 v12, s29, v12")
    a("v_and_b32 v13, 1, v8")
    a("v_lshl_add_u32 v14, v13, 4, v7")
    a("v_mul_u32_u24 v14, 28672, v14")
    a("v_lshl_add_u32 v14, v12, 7, v14")
    a("s_mul_i32 s29, s22, 896")
    a("s_lshl_b32 s30, s23, 4")
    a("s_add_u32 s29, s29, s30")
    a(f"s_add_u32 s30, s29, {32*28672}")
    a("v_lshlrev_b32 v15, 8, v12")
    a("s_lshl_b32 s31, s23, 5")
    a(f"s_add_u32 s31, s31, {MOD + 2*448*4}")
    a(f"s_add_u32 s32, s31, {2*448*4}")
    a("s_cmp_eq_u32 s16, 3")
    a("s_cselect_b32 s35, 0, -1")
    a("s_mov_b32 s34, -1")
    srd(a, 8, 4, X_BYTES)
    a("s_mov_b64 exec, s[34:35]")
    a(f"buffer_load_dwordx4 {vr(XV,4)}, v14, s[8:11], s29 offen")
    a(f"buffer_load_dwordx4 {vr(XV+4,4)}, v14, s[8:11], s30 offen")
    a(f"buffer_load_dwordx4 {vr(GA_,4)}, v15, s[12:15], s31 offen")
    a(f"buffer_load_dwordx4 {vr(GA_+4,4)}, v15, s[12:15], s31 offen offset:16")
    a(f"buffer_load_dwordx4 {vr(CB_,4)}, v15, s[12:15], s32 offen")
    a(f"buffer_load_dwordx4 {vr(CB_+4,4)}, v15, s[12:15], s32 offen offset:16")
    a("s_mov_b64 exec, -1")
    a("s_lshl_b32 s36, s16, 10")
    a(f"s_add_u32 s37, s36, {X1C + 128*RT}")
    a(f"s_add_u32 s38, s36, {L_AUX}")
    for k in range(4):
        a("s_mov_b32 m0, s38")
        a("s_add_u32 s38, s38, 4096")
        a("buffer_load_dwordx4 v9, s[12:15], s37 offen lds")
        a("s_add_u32 s37, s37, 4096")
    a("v_lshlrev_b32 v16, 8, v8")
    a("v_bfe_u32 v17, v7, 3, 1")
    a("v_lshl_add_u32 v16, v17, 7, v16")
    a("v_and_b32 v17, 1, v7")
    a("v_lshl_add_u32 v16, v17, 6, v16")
    a("v_bfe_u32 v17, v7, 2, 1")
    a("v_lshl_add_u32 v16, v17, 5, v16")
    a("v_bfe_u32 v17, v7, 1, 1")
    a("v_lshl_add_u32 v16, v17, 4, v16")
    a("s_lshl_b32 s39, s26, 2")
    a("s_add_u32 s39, s39, s16")
    a("s_mul_i32 s40, s39, 57344")
    a(f"s_add_u32 s40, s40, {W1P}")

    def w1load(ks):
        for t in range(4):
            a(f"buffer_load_dwordx4 {vr((ks*4+t)*4,4,'a')}, v16, s[12:15], s40 offen offset:{t*1024}")
        a("s_add_u32 s40, s40, 4096")
    W1_EARLY = 5
    for ks in range(W1_EARLY):
        w1load(ks)
    a("v_lshrrev_b32 v17, 3, v7")
    a("s_lshl_b32 s41, s16, 1")
    a("v_add_u32 v17, s41, v17")
    a("v_lshl_add_u32 v18, v17, 6, v11")
    a("s_lshl_b32 s41, s23, 3")
    a("v_add_u32 v18, s41, v18")
    a("v_mul_u32_u24 v18, v18, v8")
    a("v_cvt_f32_u32 v18, v18")
    a(f"v_mul_f32 v18, {fl(1/448)}, v18")
    a("v_cos_f32 v19, v18")
    a("v_sin_f32 v20, v18")
    a("v_cmp_eq_u32 vcc, 0, v8")
    a("v_cndmask_b32 v21, 2.0, 1.0, vcc")
    a("v_cmp_gt_u32 vcc, 7, v17")
    a("v_cndmask_b32 v21, 0, v21, vcc")
    a("v_mul_f32 v19, v19, v21")
    a("v_mul_f32 v20, v20, v21")
    a("v_cvt_pk_bf16_f32 v22, v19, -v20")
    a("v_cvt_pk_bf16_f32 v23, v20, v19")
    for k in range(8):
        m = 0x01010101 << k
        a(f"s_mov_b32 s{44+2*k}, {hex(m)}")
        a(f"s_mov_b32 s{45+2*k}, {hex(m)}")
    RB = 96
    rb = lambda z, ri: RB + (z * 2 + ri) * 4
    for z in range(2):
        for ri in range(2):
            for r in range(4):
                k = 4 * z + r
                a(f"v_cndmask_b32 v{rb(z,ri)+r}, 0, v{22+ri}, s[{44+2*k}:{45+2*k}]")
    M3 = 160
    m3 = lambda it, pi, cs: M3 + ((it * 2 + pi) * 2 + cs) * 4
    a("v_lshrrev_b32 v17, 1, v8")
    a("v_lshlrev_b32 v17, 1, v17")
    a("v_lshl_add_u32 v17, v13, 4, v17")
    a("v_cvt_f32_u32 v17, v17")
    for it in range(2):
        a(f"v_add_u32 v18, {16*it}, v7")
        a("v_cvt_f32_u32 v18, v18")
        a(f"v_mul_f32 v18, {fl(1/64)}, v18")
        a("v_mul_f32 v19, v18, v17")
        for pi in range(2):
            for dd in range(4):
                K = pi + 4 * (dd >> 1) + 8 * (dd & 1)
                a(f"v_fmamk_f32 v20, v18, {fl(float(K))}, v19")
                a("v_cos_f32 v21, v20")
                a("v_sin_f32 v22, v20")
                a(f"v_cvt_pk_bf16_f32 v{m3(it,pi,0)+dd}, v21, v21")
                a(f"v_cvt_pk_bf16_f32 v{m3(it,pi,1)+dd}, -v22, v22")
    a("s_mov_b32 s60, 0xaaaa")
    a("s_mov_b32 s61, 0")
    a("v_mov_b32 v20, 0xbf803f80")
    for it in range(2):
        a(f"v_cndmask_b32 v{m3(it,0,0)}, v{m3(it,0,0)}, v20, s[60:61]")
    a(f"v_mul_u32_u24 v17, {RT}, v13")
    a("v_add_u32 v17, v17, v15")
    a("v_lshl_add_u32 v17, v7, 4, v17")
    a(f"s_mul_i32 s41, s22, {4*RT}")
    a("s_mul_i32 s42, s23, 1792")
    a("s_add_u32 s41, s41, s42")
    a(f"s_add_u32 s42, s41, {X1}")
    a(f"s_add_u32 s41, s41, {X1C}")
    a(f"s_add_u32 s62, s41, {2*RT}")
    a(f"s_add_u32 s63, s42, {2*RT}")
    a("v_lshlrev_b32 v18, 9, v12")
    a("v_lshl_add_u32 v18, v13, 7, v18")
    a("v_lshl_add_u32 v18, v7, 3, v18")
    a("s_mov_b32 s43, 0x3f803f80")
    st()
    G = 112
    for nu in range(4):
        for z in range(2):
            for ri in range(2):
                d = vr(G + (nu * 2 + ri) * 4, 4)
                a(f"{MFMA} {d}, {vr(zd(z,nu),4)}, {vr(rb(z,ri),4)}, {d if z else 0}")
    XU = 232
    for k in range(8):
        a(f"v_lshlrev_b32 v{XU+2*k}, 16, v{XV+k}")
        a(f"v_and_b32 v{XU+2*k+1}, 0xffff0000, v{XV+k}")
    GA = 144
    EO = 192
    for pi in range(2):
        for ri in range(2):
            for dd in range(4):
                s_ = G + ((2 * pi + (dd >> 1)) * 2 + ri) * 4 + 2 * (dd & 1)
                a(f"v_cvt_pk_bf16_f32 v{GA+(pi*2+ri)*4+dd}, v{s_}, v{s_+1}")
    for ri in range(2):
        for pi in range(2):
            for it in range(2):
                d = vr(EO + (it * 2 + pi) * 4, 4)
                a(f"{MFMA} {d}, {vr(GA+(pi*2+ri)*4,4)}, {vr(m3(it,pi,ri),4)}, {d if ri else 0}")
    Y = 64
    for it in range(2):
        for r in range(4):
            e_, o_ = EO + it * 8 + r, EO + it * 8 + 4 + r
            a(f"v_add_f32 v{Y+it*4+r}, v{e_}, v{o_}")
            a(f"v_sub_f32 v{Y+8+it*4+r}, v{e_}, v{o_}")
    for P in range(2):
        for r in range(4):
            a(f"v_permlane16_swap_b32 v{Y+P*8+r}, v{Y+P*8+4+r}")
    O1, O2, SS = 80, 88, 96
    for k in range(4):
        a(f"v_mov_b32 v{SS+k}, 0")
    for P in range(2):
        for e in range(8):
            a(f"v_fma_f32 v{Y+P*8+e}, v{Y+P*8+e}, v{GA_+e}, v{XU+P*8+e}")
        for k in range(4):
            a(f"v_cvt_pk_bf16_f32 v{O1+P*4+k}, v{Y+P*8+2*k}, v{Y+P*8+2*k+1}")
        for e in range(8):
            a(f"v_mul_f32 v{Y+P*8+e}, v{Y+P*8+e}, v{CB_+e}")
        for k in range(4):
            a(f"v_cvt_pk_bf16_f32 v{O2+P*4+k}, v{Y+P*8+2*k}, v{Y+P*8+2*k+1}")
    a("s_mov_b64 exec, s[34:35]")
    a(f"buffer_store_dwordx4 {vr(O2,4)}, v17, s[12:15], s41 offen sc1")
    a(f"buffer_store_dwordx4 {vr(O2+4,4)}, v17, s[12:15], s62 offen sc1")
    a(f"buffer_store_dwordx4 {vr(O1,4)}, v17, s[12:15], s42 offen sc1")
    a(f"buffer_store_dwordx4 {vr(O1+4,4)}, v17, s[12:15], s63 offen sc1")
    a("s_mov_b64 exec, -1")
    for k in range(4):
        for P in range(2):
            a(f"v_dot2c_f32_bf16 v{SS+2*P}, s43, v{O1+P*4+k}")
            a(f"v_dot2c_f32_bf16 v{SS+2*P+1}, v{O1+P*4+k}, v{O1+P*4+k}")
    for P in range(2):
        a(f"ds_write_b64 v18, {vr(SS+2*P,2)} offset:{L_PST - 0x10000 + P*256}" if False else f"ds_write_b64 v18, {vr(SS+2*P,2)} offset:{P*256}")
    a("s_waitcnt lgkmcnt(0)")
    a("s_barrier")
    a("s_cmp_lg_u32 s16, 0")
    a("s_cbranch_scc1 L_k3_nostat")
    vm_save = list(a.vm)
    a("v_lshlrev_b32 v19, 3, v2")
    for k in range(8):
        a(f"ds_read_b64 {vr(112+2*k,2)}, v19 offset:{k*512}")
    for st_ in (8, 4, 2):
        for k in range(st_):
            a(f"v_add_f32 v{112+k}, v{112+k}, v{112+k+st_}")
    a("v_lshlrev_b32 v19, 10, v8")
    a("v_lshl_add_u32 v19, v7, 3, v19")
    a("s_lshl_b32 s64, s22, 12")
    a("s_lshl_b32 s65, s23, 7")
    a("s_add_u32 s64, s64, s65")
    a(f"s_add_u32 s64, s64, {STATS}")
    a("buffer_store_dwordx2 v[112:113], v19, s[12:15], s64 offen sc1")
    a.label("L_k3_nostat")
    a("s_waitcnt vmcnt(0)")
    a("s_barrier")
    st()
    a("s_cmp_lg_u32 s16, 0")
    a("s_cbranch_scc1 L_k3_nosigc")
    a("s_lshr_b32 s64, s22, 1")
    a("s_lshl_b32 s64, s64, 7")
    a(f"v_mov_b32 v19, s64")
    a("v_mov_b32 v20, 1")
    a("s_mov_b64 exec, 1")
    a.raw(f"    buffer_atomic_add v20, v19, s[12:15], 0 offen offset:{CNT_C} sc1")
    a("s_mov_b64 exec, -1")
    a.label("L_k3_nosigc")
    a("s_cmp_ge_u32 s18, 28")
    a("s_cbranch_scc1 L_k3_fin")
    for ks in range(W1_EARLY, 14):
        w1load(ks)
    a("s_lshl_b32 s64, s24, 7")
    a(f"s_add_u32 s64, s64, {CNT_C}")
    a("v_mov_b32 v19, s64")
    poll(a, "c", 19, 16, 20)
    st()
    a(f"s_mul_i32 s37, s24, {8*RT}")
    a(f"s_add_u32 s37, s37, {X1C}")
    a("s_add_u32 s37, s37, s36")
    a("s_mov_b32 s38, s36")
    a("v_lshlrev_b32 v19, 10, v12")
    a("v_lshl_add_u32 v19, v13, 9, v19")
    a("v_lshl_add_u32 v19, v7, 3, v19")
    a("s_lshl_b32 s64, s24, 13")
    a(f"s_add_u32 s64, s64, {STATS}")
    dma = []
    def a1dma():
        a("s_mov_b32 m0, s38")
        a("s_add_u32 s38, s38, 4096")
        dma.append(a("buffer_load_dwordx4 v9, s[12:15], s37 offen sc1 lds"))
        a("s_add_u32 s37, s37, 4096")
    for k in range(4):
        a1dma()
    for k in range(4):
        a(f"buffer_load_dwordx2 {vr(24+2*k,2)}, v19, s[12:15], s64 offen offset:{k*128} sc1")
    for k in range(4, 28):
        a1dma()
    ACC = (32, 48)
    CS, BI = 64, 80
    BF, NB = 96 - 0, 4
    T1 = 112
    HO = 128
    RS_ = 136
    WD_V0 = 140
    def wdreg(i):
        if i < 29:
            return vr(WD_V0 + 4 * i, 4)
        if i < 37:
            return vr(224 + 4 * (i - 29), 4, "a")
        return vr(4 * (i - 37), 4, "a")
    a("s_mul_i32 s66, s23, 56")
    a("s_mul_i32 s67, s16, 14")
    a("s_add_u32 s66, s66, s67")
    a("s_lshl_b32 s66, s66, 12")
    a(f"s_add_u32 s66, s66, {WDP}")
    def wdload(i):
        def f():
            a(f"buffer_load_dwordx4 {wdreg(i)}, v16, s[12:15], s66 offen offset:{(i&3)*1024}")
            if (i & 3) == 3:
                a("s_add_u32 s66, s66, 4096")
        return f
    a("s_mul_i32 s68, s24, 448")
    a("s_add_u32 s68, s68, s39")
    a("s_lshl_b32 s68, s68, 10")
    a(f"s_add_u32 s68, s68, {HWS}")
    a(f"v_add_u32 v21, {4*RT}, v9")
    a("v_lshlrev_b32 v22, 3, v7")
    a(f"v_add_u32 v22, {L_RST}, v22")

    def bread(tile, ks):
        base, off = ("v9", tile * RT) if tile < 4 else ("v21", (tile - 4) * RT)
        off += ks * 1024
        if off > 65535:
            base, off = "v23", off - 4 * RT
        return f"ds_read_b128 {vr(BF + 4*(slot(tile, ks) % NB), 4)}, {base} offset:{off}"
    a(f"v_add_u32 v23, {8*RT}, v9")
    order = [8, 0, 1, 2, 3, 4, 5, 6, 7]
    slot = lambda tile, ks: order.index(tile) * 14 + ks
    seq = [(t, ks) for t in order for ks in range(14)]
    need = {0: 3, 1: 6, 2: 13, 4: 27}

    def stats_code():
        a("v_add_f32 v24, v24, v26")
        a("v_add_f32 v25, v25, v27")
        a("v_add_f32 v28, v28, v30")
        a("v_add_f32 v29, v29, v31")
        a("v_add_f32 v24, v24, v28")
        a("v_add_f32 v25, v25, v29")
        a("v_mov_b32 v26, v24")
        a("v_mov_b32 v27, v25")
        a("v_permlane16_swap_b32 v24, v26")
        a("v_permlane16_swap_b32 v25, v27")
        a("v_add_f32 v24, v24, v26")
        a("v_add_f32 v25, v25, v27")
        a(f"v_mul_f32 v24, {fl(1/448)}, v24")
        a(f"v_mul_f32 v25, {fl(1/448)}, v25")
        a("v_fma_f32 v25, -v24, v24, v25")
        a("v_max_f32 v25, 0, v25")
        a(f"v_add_f32 v25, {fl(1e-5)}, v25")
        a("v_rsq_f32 v26, v25")
        a("v_lshl_add_u32 v28, v12, 7, v22")
        a("v_mul_f32 v27, v24, v26")
        a("ds_write_b64 v28, v[26:27]")

    def epilogue(tile):
        ac = ACC[order.index(tile) & 1]
        L = []
        if tile == 8:
            for k in range(16):
                L.append(f"v_mov_b32_dpp v{CS+k}, v{ac+k} row_newbcast:0 {DPPM}")
                L.append(f"v_mov_b32_dpp v{BI+k}, v{ac+k} row_newbcast:1 {DPPM}")
            return L
        rs = RS_ + 2 * (tile & 1)
        ho = HO + 4 * (tile & 1)
        for t in range(4):
            for r in range(4):
                k = t * 4 + r
                L.append(f"v_fma_f32 v{T1+k}, -v{rs+1}, v{CS+k}, v{BI+k}")
        for t in range(4):
            for r in range(4):
                k = t * 4 + r
                L.append(f"v_fmac_f32 v{T1+k}, v{rs}, v{ac+k}")
            for r in range(2):
                L.append(f"v_max_f32 v{T1+t*4+r}, 0, v{T1+t*4+r}")
                L.append(f"v_mul_f32 v{T1+t*4+r}, v{T1+t*4+r}, v{T1+t*4+2+r}")
            L.append(f"v_cvt_pk_bf16_f32 v{ho+t}, v{T1+t*4}, v{T1+t*4+1}")
        L.append(f"buffer_store_dwordx4 {vr(ho,4)}, v9, s[12:15], s68 offen sc1")
        L.append("s_add_u32 s68, s68, 57344")
        return L

    PF = 3
    rd_i = 0
    def issue_read():
        nonlocal rd_i
        if rd_i >= len(seq):
            return
        t, ks = seq[rd_i]
        if ks == 0 and t in need:
            if t == 1:
                stats_code()
                a("s_waitcnt lgkmcnt(0)")
            a.wait_vm(dma[need[t]])
            a("s_barrier")
        a(bread(t, ks))
        rd_i += 1
    for _ in range(PF):
        issue_read()
    wd_i = 0
    for oi, tile in enumerate(order):
        ac = ACC[oi & 1]
        main = []
        for ks in range(14):
            for t in range(4):
                d = vr(ac + t * 4, 4)
                main.append(f"{MFMA} {d}, {vr((ks*4+t)*4,4,'a')}, {vr(BF+4*(slot(tile,ks)%NB),4)}, {d if ks else 0}")
                if t == 0:
                    main.append(issue_read)
        fill = []
        if oi > 0:
            prev = order[oi - 1]
            if prev != 8:
                fill.append(f"ds_read_b64 {vr(RS_+2*(prev&1),2)}, v22 offset:{prev*128}")
            fill += epilogue(prev)
        if oi >= 3:
            extra = [wdload(i) for i in range(wd_i, min(wd_i + 7, 37))]
            wd_i += len(extra)
            step = max(1, len(fill) // (len(extra) + 1)) if extra else 1
            for k, f in enumerate(extra):
                fill.insert(min(len(fill), (k + 1) * (step + 1)), f)
        interleave(a, main, fill, start=6)
    a(f"ds_read_b64 {vr(RS_+2,2)}, v22 offset:{7*128}")
    for ins in epilogue(7):
        a(ins)
    st()
    a("s_waitcnt vmcnt(0)")
    a("s_barrier")
    a("s_cmp_lg_u32 s16, 0")
    a("s_cbranch_scc1 L_k3_nosigd")
    a("s_lshl_b32 s64, s24, 1")
    a("s_add_u32 s64, s64, s25")
    a("s_lshl_b32 s64, s64, 7")
    a(f"s_add_u32 s64, s64, {CNT_D}")
    a("v_mov_b32 v19, s64")
    a("v_mov_b32 v20, 1")
    a("s_mov_b64 exec, 1")
    a.raw("    buffer_atomic_add v20, v19, s[12:15], 0 offen sc1")
    a("s_mov_b64 exec, -1")
    a.label("L_k3_nosigd")
    st()
    for i in range(wd_i, 56):
        wdload(i)()
    XR_, GB_ = 96, 104
    a("v_mul_u32_u24 v24, 3584, v8")
    a("v_lshl_add_u32 v24, v7, 4, v24")
    a("s_lshl_b32 s64, s22, 2")
    a("s_add_u32 s64, s64, s16")
    a(f"s_mul_i32 s64, s64, {RT}")
    a("s_lshl_b32 s65, s23, 8")
    a("s_add_u32 s64, s64, s65")
    a(f"s_add_u32 s64, s64, {X1}")
    a("v_lshlrev_b32 v25, 6, v8")
    a(f"s_add_u32 s65, s65, {MOD + 5*448*4}")
    for k in range(4):
        a(f"buffer_load_dwordx4 {vr(GB_+4*k,4)}, v25, s[12:15], s65 offen offset:{k*16}")
    a("s_lshr_b32 s69, s22, 1")
    a("s_lshl_b32 s69, s69, 1")
    a("s_lshr_b32 s70, s16, 1")
    a("s_add_u32 s69, s69, s70")
    a("s_lshl_b32 s69, s69, 7")
    a(f"s_add_u32 s69, s69, {CNT_D}")
    a("v_mov_b32 v19, s69")
    poll(a, "d", 19, 7, 20)
    st()
    a("s_mul_i32 s69, s22, 224")
    a("s_add_u32 s69, s69, s67")
    a("s_lshl_b32 s69, s69, 10")
    a(f"s_add_u32 s69, s69, {HWS}")
    A2_0, A2_N = 76, 37
    a2reg = lambda i: vr(A2_0 + 4 * (i % A2_N), 4, "a")
    def a2load(i):
        rho, k = divmod(i, 14)
        if k % 4 == 0:
            a(f"s_add_u32 s70, s69, {rho*57344 + k*1024}")
        a(f"buffer_load_dwordx4 {a2reg(i)}, v9, s[12:15], s70 offen offset:{(k%4)*1024} sc1")
    for i in range(A2_N):
        a2load(i)
    a(f"buffer_load_dwordx4 {vr(XR_,4)}, v24, s[12:15], s64 offen sc1")
    a(f"buffer_load_dwordx4 {vr(XR_+4,4)}, v24, s[12:15], s64 offen offset:1792 sc1")
    AC2 = 32
    a("s_lshl_b32 s71, s16, 14")
    a("v_add_u32 v26, s71, v9")
    a("s_lshl_b32 s71, s16, 12")
    a("v_add_u32 v27, s71, v9")
    nxt = A2_N
    pend = []
    for rho in range(4):
        for k in range(14):
            i = rho * 14 + k
            for t in range(4):
                d = vr(AC2 + (rho * 4 + t) * 4, 4)
                a(f"{MFMA} {d}, {wdreg(k*4+t)}, {a2reg(i)}, {d if k else 0}")
            if nxt < 56:
                a2load(nxt)
                nxt += 1
            if pend and k >= 3:
                a(pend.pop(0))
        pend = [f"ds_write_b128 v26, {vr(AC2+(rho*4+t)*4,4)} offset:{(rho*4+t)*1024}" for t in range(4)]
    for p in pend:
        a(p)
    XU2 = 120
    for k in range(8):
        a(f"v_lshlrev_b32 v{XU2+2*k}, 16, v{XR_+k}")
        a(f"v_and_b32 v{XU2+2*k+1}, 0xffff0000, v{XR_+k}")
    a("s_lshl_b32 s64, s16, 9")
    a("s_add_u32 s64, s64, s22")
    a("s_mul_i32 s64, s64, 896")
    a("s_lshl_b32 s65, s23, 7")
    a("s_add_u32 s64, s64, s65")
    a("v_mul_u32_u24 v24, 28672, v7")
    a("v_lshl_add_u32 v24, v8, 5, v24")
    srd(a, 8, 20, X_BYTES)
    a("s_waitcnt lgkmcnt(0)")
    a("s_barrier")
    st()
    PR = 140
    for t in range(4):
        for sw in range(4):
            a(f"ds_read_b128 {vr(PR+(t*4+sw)*4,4)}, v27 offset:{sw*16384+t*1024}")
    OO = 32
    for t in range(4):
        b_ = PR + t * 16
        for r in range(4):
            a(f"v_add_f32 v{b_+r}, v{b_+r}, v{b_+4+r}")
            a(f"v_add_f32 v{b_+8+r}, v{b_+8+r}, v{b_+12+r}")
            a(f"v_add_f32 v{b_+r}, v{b_+r}, v{b_+8+r}")
            e = 8 * (r >> 1) + 2 * t + (r & 1)
            a(f"v_fma_f32 v{b_+r}, v{b_+r}, v{GB_+e}, v{XU2+e}")
        a(f"v_cvt_pk_bf16_f32 v{OO+t}, v{b_}, v{b_+1}")
        a(f"v_cvt_pk_bf16_f32 v{OO+4+t}, v{b_+2}, v{b_+3}")
    a(f"buffer_store_dwordx4 {vr(OO,4)}, v24, s[8:11], s64 offen")
    a(f"buffer_store_dwordx4 {vr(OO+4,4)}, v24, s[8:11], s64 offen offset:16")
    st()
    a.label("L_k3_fin")
    st.flush(16, 12, "k3")
    a.label("L_k3_end")
    a("s_endpgm")
    return kdesc("k3_kernel", 256, 256, 96)
```

```python
import sys, math
from asmgen import Asm, vr, fl, f2u

FLAGS = 0x0
MOD = 0x4000
STATS = 0x10000
NWS = 0x100000
ZWS = 0x300000
X1C = 0x500000
X1 = 0x700000
W1P = 0x900000
WDP = 0xD00000
HWS = 0x1000000
TS = 0x2000000
WS_BYTES = 0x10000000
RT = 14336

X_BYTES = 2048 * 448 * 2
W_BYTES = 2048 * 225 * 2
FW_BYTES = 448 * 1792 * 2
WM_BYTES = 448 * 2688 * 2

MFMA = "v_mfma_f32_16x16x32_bf16"
DPPM = "row_mask:0xf bank_mask:0xf"


def srd(a, d, base, nbytes):
    a(f"s_mov_b32 s{d}, s{base}")
    a(f"s_and_b32 s{d+1}, s{base+1}, 0xffff")
    a(f"s_mov_b32 s{d+2}, {hex(nbytes)}")
    a(f"s_mov_b32 s{d+3}, 0x20000")


def kstart(a, name):
    a.reset()
    a.raw(f".globl {name}\n.p2align 8\n.type {name},@function\n{name}:")


def kdesc(name, nv, na, ns, lds=0):
    acc = max(4, (nv + 3) // 4 * 4)
    tot = acc + na if na else nv
    return f""".p2align 6
.amdhsa_kernel {name}
  .amdhsa_next_free_vgpr {tot}
  .amdhsa_next_free_sgpr {ns}
  .amdhsa_accum_offset {acc}
  .amdhsa_group_segment_fixed_size 0
  .amdhsa_kernarg_size 96
  .amdhsa_user_sgpr_count 2
  .amdhsa_user_sgpr_kernarg_segment_ptr 1
  .amdhsa_system_sgpr_workgroup_id_x 1
  .amdhsa_float_denorm_mode_32 3
  .amdhsa_float_denorm_mode_16_64 3
.end_amdhsa_kernel
"""


class Stamp:
    def __init__(self, a, on, kidx):
        self.a, self.on, self.n, self.kidx = a, on, 0, kidx

    def __call__(self):
        if self.on and self.n < 8:
            self.a(f"s_memrealtime s[{80 + 2*self.n}:{81 + 2*self.n}]")
            self.n += 1

    def flush(self, swave, ws_srd, tag):
        if not self.on:
            return
        a = self.a
        a("s_waitcnt lgkmcnt(0)")
        a(f"s_cmp_lg_u32 s{swave}, 0")
        a(f"s_cbranch_scc1 L_nots_{tag}")
        a.pad()
        for i in range(8):
            a(f"v_mov_b32 v{i}, s{80 + 2*i}" if i < self.n else f"v_mov_b32 v{i}, 0")
        a("s_lshl_b32 s79, s2, 5")
        a(f"s_add_u32 s79, s79, {TS + self.kidx * 0x8000}")
        a("v_mov_b32 v8, s79")
        a("s_mov_b64 exec, 1")
        a(f"buffer_store_dwordx4 v[0:3], v8, s[{ws_srd}:{ws_srd+3}], 0 offen")
        a(f"buffer_store_dwordx4 v[4:7], v8, s[{ws_srd}:{ws_srd+3}], 0 offen offset:16")
        a.label(f"L_nots_{tag}")


K1_MOD0 = 224
K1_ZERO = 308
K1_PREP0 = 309
K1_GRID = K1_PREP0 + 147
K1_LDS = 64 * 160
import os
PREP_ST = os.environ.get("PREP_ST", "sc1")


def k1(a, ts=False):
    kstart(a, "k1_kernel")
    st = Stamp(a, ts, 0)
    st()
    a("s_load_dwordx2 s[4:5], s[0:1], 0")
    a("s_load_dwordx2 s[6:7], s[0:1], 88")
    a("v_lshrrev_b32 v1, 6, v0")
    a("v_and_b32 v2, 63, v0")
    a("v_readfirstlane_b32 s16, v1")
    a(f"s_cmp_ge_u32 s2, {K1_MOD0}")
    a("s_cbranch_scc1 L_k1_other")
    a("s_and_b32 s17, s2, 7")
    a("s_lshr_b32 s18, s2, 3")
    a("s_and_b32 s19, s18, 3")
    a("s_lshl_b32 s17, s17, 2")
    a("s_add_u32 s17, s17, s19")
    a("s_lshr_b32 s18, s18, 2")
    a("s_lshl_b32 s20, s18, 7")
    for t in range(1, 7):
        a(f"s_add_u32 s{20+t}, s{19+t}, 128")
        a(f"s_cmp_ge_u32 s{20+t}, 896")
        a(f"s_cselect_b32 s{20+t}, 0, s{20+t}")
    a("v_lshrrev_b32 v3, 3, v2")
    a("v_and_b32 v4, 7, v2")
    a("v_mul_u32_u24 v5, 28672, v3")
    a("v_lshl_add_u32 v5, v4, 4, v5")
    a("s_lshl_b32 s27, s16, 9")
    a("s_add_u32 s27, s27, s17")
    a("s_mul_i32 s27, s27, 896")
    a("v_add_u32 v5, s27, v5")
    a(f"v_add_u32 v6, {8*28672}, v5")
    srd(a, 8, 4, X_BYTES)
    XR = 16
    xr = lambda hf, t: XR + (hf * 7 + t) * 4
    for t in range(7):
        for hf in range(2):
            a(f"buffer_load_dwordx4 {vr(xr(hf,t),4)}, v{5+hf}, s[8:11], s{20+t} offen")
    srd(a, 12, 6, WS_BYTES)
    MT = 72
    mt = lambda vt, ri, ks: MT + ((vt * 2 + ri) * 2 + ks) * 4
    C, S = 104, 112
    a("v_and_b32 v7, 15, v2")
    a("v_lshrrev_b32 v8, 4, v2")
    a("v_cvt_f32_u32 v9, v7")
    a(f"v_mul_f32 v9, {fl(1/64)}, v9")
    a("v_cvt_f32_u32 v10, v8")
    a("v_mul_f32 v10, 4.0, v10")
    a("v_mul_f32 v10, v10, v9")
    for e in range(8):
        K = 16 * (e >> 2) + (e & 3)
        a(f"v_fmamk_f32 v11, v9, {fl(float(K))}, v10")
        a(f"v_cos_f32 v{C+e}, v11")
        a(f"v_sin_f32 v{S+e}, v11")
    def cs(vt, e):
        k = (e & 3) * vt
        c, s = f"v{C+e}", f"v{S+e}"
        neg = lambda x: x[1:] if x.startswith("-") else "-" + x
        cc = [c, neg(s), neg(c), s][k]
        ss = [s, c, neg(s), neg(c)][k]
        return cc, neg(ss)
    for vt in range(2):
        for d in range(4):
            r0, i0 = cs(vt, 2 * d)
            r1, i1 = cs(vt, 2 * d + 1)
            a(f"v_cvt_pk_bf16_f32 v{mt(vt,0,0)+d}, {r0}, {r1}")
            a(f"v_cvt_pk_bf16_f32 v{mt(vt,1,0)+d}, {i0}, {i1}")
    a("s_mov_b32 s28, 0x00010001")
    a("s_mov_b32 s29, 0x00010001")
    a("v_mov_b32 v11, 0xbf803f80")
    for d in range(4):
        a(f"v_cndmask_b32 v{mt(0,1,0)+d}, v{mt(0,1,0)+d}, v11, s[28:29]")
    a("v_and_b32 v12, 1, v2")
    a("v_mul_u32_u24 v12, 0x8000, v12")
    a("v_lshl_or_b32 v12, v12, 16, v12")
    for vt in range(2):
        for ri in range(2):
            for d in range(4):
                a(f"v_xor_b32 v{mt(vt,ri,1)+d}, v{mt(vt,ri,0)+d}, v12")
    a("s_lshl_b32 s30, s16, 4")
    a("v_add_u32 v13, s30, v3")
    a("v_mul_u32_u24 v13, 160, v13")
    a("v_lshl_add_u32 v13, v4, 4, v13")
    a("v_lshrrev_b32 v14, 2, v2")
    a("v_mul_u32_u24 v14, 160, v14")
    a("v_and_b32 v11, 3, v2")
    a("v_lshl_add_u32 v14, v11, 3, v14")
    a("s_lshl_b32 s30, s16, 5")
    a("v_add_u32 v14, s30, v14")
    a("v_lshlrev_b32 v15, 16, v7")
    a("v_lshl_add_u32 v15, v8, 10, v15")
    a("s_lshr_b32 s30, s18, 1")
    a("s_lshl_b32 s30, s30, 14")
    a("s_lshl_b32 s31, s16, 12")
    a("s_add_u32 s30, s30, s31")
    a("s_lshr_b32 s31, s17, 2")
    a("s_lshl_b32 s31, s31, 7")
    a("s_add_u32 s30, s30, s31")
    a("s_and_b32 s31, s18, 1")
    a("s_lshl_b32 s31, s31, 6")
    a("s_add_u32 s30, s30, s31")
    a("s_and_b32 s31, s17, 3")
    a("s_lshl_b32 s31, s31, 4")
    a("s_add_u32 s30, s30, s31")
    a(f"s_add_u32 s30, s30, {NWS}")
    a(f"s_add_u32 s31, s30, {16*65536}")
    U = 104
    AC = 120
    a("s_mov_b32 s32, 0x3f803f80")
    for k in range(4):
        a(f"v_mov_b32 v{AC+k}, 0")
    for t in range(7):
        for hf in range(2):
            for d in range(4):
                r = xr(hf, t) + d
                a(f"v_dot2c_f32_bf16 v{AC+2*hf}, s32, v{r}")
                a(f"v_dot2c_f32_bf16 v{AC+2*hf+1}, v{r}, v{r}")
                if t == 0:
                    a(f"v_lshlrev_b32 v{U+hf*8+2*d}, 16, v{r}")
                    a(f"v_and_b32 v{U+hf*8+2*d+1}, 0xffff0000, v{r}")
    st()
    for m in ("quad_perm:[1,0,3,2]", "quad_perm:[2,3,0,1]", "row_half_mirror"):
        for k in range(4):
            a(f"v_add_f32_dpp v{AC+k}, v{AC+k}, v{AC+k} {m} {DPPM}")
    for hf in range(2):
        s_, q_ = AC + 2 * hf, AC + 2 * hf + 1
        a(f"v_mul_f32 v{s_}, {fl(1/448)}, v{s_}")
        a(f"v_mul_f32 v{q_}, {fl(1/448)}, v{q_}")
        a(f"v_fma_f32 v{q_}, -v{s_}, v{s_}, v{q_}")
        a(f"v_max_f32 v{q_}, 0, v{q_}")
        a(f"v_add_f32 v{q_}, {fl(1e-5)}, v{q_}")
        a(f"v_rsq_f32 v{q_}, v{q_}")
    for hf in range(2):
        s_, q_ = AC + 2 * hf, AC + 2 * hf + 1
        a(f"v_mul_f32 v{s_}, v{s_}, v{q_}")
    for hf in range(2):
        s_, q_ = AC + 2 * hf, AC + 2 * hf + 1
        for e in range(8):
            a(f"v_fma_f32 v{U+hf*8+e}, v{U+hf*8+e}, v{q_}, -v{s_}")
        for d in range(4):
            a(f"v_cvt_pk_bf16_f32 v{XR+hf*4+d}, v{U+hf*8+2*d}, v{U+hf*8+2*d+1}")
        a(f"ds_write_b128 v13, {vr(XR+hf*4,4)} offset:{hf*8*160}")
    a("s_waitcnt lgkmcnt(0)")
    a("s_barrier")
    AF = 24
    for ks in range(2):
        for rho in range(2):
            a(f"ds_read_b64_tr_b16 {vr(AF+ks*4+rho*2,2)}, v14 offset:{(32*ks+16*rho)*160}")
    ACC = 32
    for ks in range(2):
        for vt in range(2):
            for ri in range(2):
                d = vr(ACC + (vt * 2 + ri) * 4, 4)
                a(f"{MFMA} {d}, {vr(AF+ks*4,4)}, {vr(mt(vt,ri,ks),4)}, {d if ks else 0}")
    O = 48
    for vt in range(2):
        for r in range(4):
            a(f"v_cvt_pk_bf16_f32 v{O+vt*4+r}, v{ACC+vt*8+r}, v{ACC+vt*8+4+r}")
        a(f"buffer_store_dwordx4 {vr(O+vt*4,4)}, v15, s[12:15], s{30+vt} offen")
    st()
    st.flush(16, 12, "k1")
    a("s_endpgm")

    a.label("L_k1_other")
    a.vm, a.hist = [], []
    a.lg = [("smem", {("s", 4), ("s", 5), ("s", 6), ("s", 7)})]
    a(f"s_cmp_ge_u32 s2, {K1_ZERO}")
    a("s_cbranch_scc1 L_k1_zero")
    a("s_load_dwordx4 s[20:23], s[0:1], 56")
    a(f"s_sub_u32 s17, s2, {K1_MOD0}")
    a("v_lshrrev_b32 v3, 2, v0")
    a("v_and_b32 v4, 3, v0")
    a("v_mul_u32_u24 v5, 5376, v3")
    a("v_lshl_add_u32 v5, v4, 4, v5")
    a("s_lshl_b32 s18, s17, 6")
    a("v_add_u32 v5, s18, v5")
    a("v_lshlrev_b32 v6, 1, v3")
    for z in range(7):
        a(f"v_mov_b32 v{44+z}, 0")
    srd(a, 8, 22, WM_BYTES)
    srd(a, 24, 20, 896)
    srd(a, 12, 6, WS_BYTES)
    for z in range(7):
        a(f"buffer_load_short_d16_hi v{44+z}, v6, s[24:27], 0 offen offset:{z*128}")
    for z in range(7):
        a(f"s_mov_b32 s19, {z*64*5376}")
        a(f"buffer_load_dwordx4 {vr(16+4*z,4)}, v5, s[8:11], s19 offen")
    for e in range(8):
        a(f"v_mov_b32 v{8+e}, 0")
    for z in range(7):
        c = 44 + z
        a(f"v_mul_f32 v60, {fl(-math.log2(math.e))}, v{c}")
        a("v_exp_f32 v60, v60")
        a("v_add_f32 v60, 1.0, v60")
        a("v_rcp_f32 v60, v60")
        a(f"v_mul_f32 v60, v60, v{c}")
        a(f"v_cvt_pk_bf16_f32 v{c}, v60, 0")
        a(f"v_lshlrev_b32 v{52+z}, 16, v{c}")
    for z in range(7):
        for d in range(4):
            a(f"v_dot2c_f32_bf16 v{8+2*d}, v{44+z}, v{16+4*z+d}")
            a(f"v_dot2c_f32_bf16 v{9+2*d}, v{52+z}, v{16+4*z+d}")
    for m in ("row_ror:4", "row_ror:8"):
        for e in range(8):
            a(f"v_add_f32_dpp v{8+e}, v{8+e}, v{8+e} {m} {DPPM}")
    a("v_lshrrev_b32 v3, 4, v0")
    a("v_lshlrev_b32 v3, 7, v3")
    a("v_lshl_add_u32 v3, v4, 5, v3")
    a("s_mov_b32 exec_lo, 0x000f000f")
    a("s_mov_b32 exec_hi, 0x000f000f")
    a("ds_write_b128 v3, v[8:11]")
    a("ds_write_b128 v3, v[12:15] offset:16")
    a("s_mov_b64 exec, -1")
    a("s_waitcnt lgkmcnt(0)")
    a("s_barrier")
    a("s_cmp_lg_u32 s16, 0")
    a("s_cbranch_scc1 L_k1_end")
    a("v_and_b32 v4, 31, v2")
    a("v_lshlrev_b32 v3, 2, v2")
    for p in range(4):
        a(f"ds_read2st64_b32 {vr(16+2*p,2)}, v3 offset0:{2*p} offset1:{2*p+1}")
    for st_ in (4, 2, 1):
        for k in range(st_):
            a(f"v_add_f32 v{16+k}, v{16+k}, v{16+k+st_}")
    a("v_mov_b32 v17, v16")
    a("v_permlane32_swap_b32 v16, v17")
    a("v_add_f32 v16, v16, v17")
    a("s_mul_i32 s18, s17, 37")
    a("s_lshr_b32 s18, s18, 9")
    a("v_cvt_pk_bf16_f32 v16, v16, 0")
    a("v_lshlrev_b32 v16, 16, v16")
    a("v_add_f32 v17, 1.0, v16")
    a("v_cvt_pk_bf16_f32 v17, v17, 0")
    a("v_lshlrev_b32 v17, 16, v17")
    a(f"v_mul_f32 v18, {fl(1/(2048*448))}, v16")
    a("s_cmp_eq_u32 s18, 1")
    a("s_cselect_b64 s[28:29], -1, 0")
    a("s_cmp_eq_u32 s18, 4")
    a("s_cselect_b64 s[30:31], -1, 0")
    a("s_or_b64 s[28:29], s[28:29], s[30:31]")
    a("v_cndmask_b32 v16, v16, v17, s[28:29]")
    a("s_cmp_eq_u32 s18, 2")
    a("s_cselect_b64 s[28:29], -1, 0")
    a("v_cndmask_b32 v16, v16, v18, s[28:29]")
    a("s_lshl_b32 s19, s17, 7")
    a(f"s_add_u32 s19, s19, {MOD}")
    a("s_mov_b32 exec_hi, 0")
    a("buffer_store_dword v16, v3, s[12:15], s19 offen")
    if ts:
        st.n = 1
        st()
        a("v_mov_b32 v20, v4")
        st.flush(16, 12, "k1m")
        a("s_mov_b32 exec_lo, -1")
        a("v_mov_b32 v4, v20")
    a("s_sub_u32 s19, s18, 3")
    a("s_cmp_gt_u32 s19, 1")
    a("s_cbranch_scc1 L_k1_end")
    a("s_mul_i32 s28, s18, 14")
    a("s_sub_u32 s28, s17, s28")
    a("s_lshl_b32 s28, s28, 5")
    a("v_add_u32 v4, s28, v4")
    a("v_lshrrev_b32 v5, 6, v4")
    a("v_bfe_u32 v6, v4, 3, 3")
    a("v_mul_u32_u24 v6, 7, v6")
    a("v_add_u32 v5, v5, v6")
    a("v_lshlrev_b32 v5, 8, v5")
    a("v_and_b32 v6, 7, v4")
    a("v_lshl_add_u32 v5, v6, 1, v5")
    a("s_xor_b32 s19, s19, 1")
    a("s_lshl_b32 s19, s19, 4")
    a(f"s_add_u32 s19, s19, {X1C + 128*RT}")
    a("buffer_store_short_d16_hi v16, v5, s[12:15], s19 offen")
    a.label("L_k1_end")
    a("s_endpgm")

    a.label("L_k1_zero")
    a.vm, a.hist = [], []
    a.lg = [("smem", {("s", 4), ("s", 5), ("s", 6), ("s", 7)})]
    a(f"s_cmp_ge_u32 s2, {K1_PREP0}")
    a("s_cbranch_scc1 L_k1_prep")
    srd(a, 12, 6, WS_BYTES)
    a("v_lshlrev_b32 v3, 4, v0")
    for k in range(4):
        a(f"v_mov_b32 v{4+k}, 0")
    for k in range(4):
        a(f"s_mov_b32 s19, {FLAGS + k*4096}")
        a("buffer_store_dwordx4 v[4:7], v3, s[12:15], s19 offen")
    a("s_endpgm")

    a.label("L_k1_prep")
    a.vm, a.hist = [], []
    a.lg = [("smem", {("s", 4), ("s", 5), ("s", 6), ("s", 7)})]
    a(f"s_cmp_ge_u32 s2, {K1_GRID}")
    a("s_cbranch_scc1 L_k1_end")
    a("s_load_dwordx4 s[20:23], s[0:1], 32")
    a("s_load_dwordx2 s[24:25], s[0:1], 48")
    a(f"s_sub_u32 s17, s2, {K1_PREP0}")
    a("s_lshl_b32 s17, s17, 2")
    a("s_add_u32 s17, s17, s16")
    a("v_bfe_u32 v3, v2, 3, 2")
    a("v_lshrrev_b32 v4, 5, v2")
    a("v_bfe_u32 v5, v2, 1, 2")
    a("v_lshlrev_b32 v6, 8, v3")
    a("v_bfe_u32 v7, v2, 2, 1")
    a("v_lshl_add_u32 v6, v7, 7, v6")
    a("v_and_b32 v7, 3, v2")
    a("v_lshl_add_u32 v6, v7, 4, v6")
    a("s_mov_b32 s36, 0x05040100")
    a("s_mov_b32 s37, 0x07060302")
    srd(a, 12, 6, WS_BYTES)
    a("s_cmp_ge_u32 s17, 392")
    a("s_cbranch_scc1 L_k1_prepd")
    IN, OUT = 16, 48
    a("s_mul_i32 s18, s17, 4682")
    a("s_lshr_b32 s18, s18, 16")
    a("s_mul_i32 s19, s18, 14")
    a("s_sub_u32 s19, s17, s19")
    a("s_lshl_b32 s26, s19, 2")
    a("v_add_u32 v8, s26, v3")
    a("v_mul_u32_u24 v9, 37, v8")
    a("v_lshrrev_b32 v9, 8, v9")
    a("v_mul_u32_u24 v10, 7, v9")
    a("v_sub_u32 v10, v8, v10")
    a("v_lshlrev_b32 v10, 6, v10")
    a("v_lshl_add_u32 v10, v9, 3, v10")
    a("v_mul_u32_u24 v10, 3584, v10")
    a("v_lshl_add_u32 v10, v4, 6, v10")
    a("v_lshl_add_u32 v10, v5, 4, v10")
    a("s_lshl_b32 s26, s18, 7")
    srd(a, 8, 20, FW_BYTES)
    srd(a, 28, 22, FW_BYTES)
    for sel in range(2):
        m = "0x55555555" if sel == 0 else "0xaaaaaaaa"
        a(f"s_mov_b32 exec_lo, {m}")
        a(f"s_mov_b32 exec_hi, {m}")
        for e in range(8):
            a(f"s_add_u32 s27, s26, {e*3584}")
            a.raw(f"    buffer_load_dwordx4 {vr(IN+4*e,4)}, v10, s[{8+20*sel}:{11+20*sel}], s27 offen")
    a("s_mov_b64 exec, -1")
    a("v_mul_u32_u24 v7, 57344, v4")
    a("v_add_u32 v6, v6, v7")
    a("s_mul_i32 s26, s18, 114688")
    a("s_lshl_b32 s27, s19, 12")
    a("s_add_u32 s26, s26, s27")
    a(f"s_add_u32 s26, s26, {W1P}")
    a("s_branch L_k1_prepx")
    a.label("L_k1_prepd")
    a("s_sub_u32 s17, s17, 392")
    a("s_mul_i32 s18, s17, 2341")
    a("s_lshr_b32 s18, s18, 16")
    a("s_mul_i32 s19, s18, 28")
    a("s_sub_u32 s19, s17, s19")
    a("v_lshlrev_b32 v10, 5, v4")
    a("v_lshl_add_u32 v10, v3, 3, v10")
    a("v_mul_u32_u24 v10, 896, v10")
    a("v_and_b32 v7, 7, v2")
    a("v_lshl_add_u32 v10, v7, 4, v10")
    a(f"s_mul_i32 s26, s19, {64*896}")
    a("s_lshl_b32 s27, s18, 7")
    a("s_add_u32 s26, s26, s27")
    srd(a, 8, 24, FW_BYTES)
    for e in range(8):
        a(f"s_add_u32 s27, s26, {e*896}")
        a.raw(f"    buffer_load_dwordx4 {vr(IN+4*e,4)}, v10, s[8:11], s27 offen")
    a("v_lshl_add_u32 v6, v4, 12, v6")
    a(f"s_mul_i32 s26, s18, {56*4096}")
    a("s_lshl_b32 s27, s19, 13")
    a("s_add_u32 s26, s26, s27")
    a(f"s_add_u32 s26, s26, {WDP}")
    a.label("L_k1_prepx")
    a("s_waitcnt vmcnt(0)")
    st.n = 1
    st()
    for t in range(4):
        for rho in range(2):
            o = OUT + (t * 2 + rho) * 4
            for kp in range(4):
                a(f"v_perm_b32 v{o+kp}, v{IN+4*(2*kp+1)+t}, v{IN+4*(2*kp)+t}, s{36+rho}")
            a(f"buffer_store_dwordx4 {vr(o,4)}, v6, s[12:15], s26 offen offset:{t*1024+rho*64} {PREP_ST}")
    st()
    if ts:
        a("s_waitcnt vmcnt(0)")
    st()
    st.flush(16, 12, "k1p")
    a("s_endpgm")
    return kdesc("k1_kernel", a.maxv + 1, 0, 96)


def build(kernels, ts=False):
    from gen23 import k2, k3, K2_LDS, K3_LDS
    a = Asm()
    hdr = open("adaLN_cond__spectral_gfnet__glu_gated_reglu__prompt.s.ref").read().split("; Override")[0]
    launches = {"k1": f"; @launch kernel=k1_kernel grid=({K1_GRID},1,1) block=(256,1,1) lds={K1_LDS}",
                "k2": f"; @launch kernel=k2_kernel grid=(256,1,1) block=(256,1,1) lds={K2_LDS}",
                "k3": f"; @launch kernel=k3_kernel grid=(256,1,1) block=(256,1,1) lds={K3_LDS}"}
    a.raw(hdr.rstrip())
    for k in kernels:
        a.raw(launches[k])
    a.raw('.amdgcn_target "amdgcn-amd-amdhsa--gfx950"\n.text')
    descs = []
    for k in kernels:
        descs.append({"k1": k1, "k2": k2, "k3": k3}[k](a, ts))
    a.raw('.section .rodata,"a"')
    for d in descs:
        a.raw(d)
    return a.text()


if __name__ == "__main__":
    out = sys.argv[1]
    ks = sys.argv[2].split(",") if len(sys.argv) > 2 else ["k1", "k2", "k3"]
    ts = len(sys.argv) > 3 and sys.argv[3] == "ts"
    open(out, "w").write(build(ks, ts))
```

```python
import os, math
from asmgen import Asm, vr, fl, f2u

FLAGS = 0x0
MOD = 0x4000
MODK2 = 0x7000
AUXB = 0x8000
STATS = 0x10000
NWS = 0x100000
ZWS = 0x300000
X1C = 0x500000
X1 = 0x700000
XT = 0x900000
WPK = 0xB00000
HWS = 0x1000000
TS = 0x2000000
WS_BYTES = 0x10000000
RT = 14336

X_BYTES = 2048 * 448 * 2
W_BYTES = 2048 * 225 * 2
FW_BYTES = 448 * 1792 * 2
WM_BYTES = 448 * 2688 * 2

MFMA = "v_mfma_f32_16x16x32_bf16"
DPPM = "row_mask:0xf bank_mask:0xf"
P_X, P_WR, P_WI, P_WG, P_WU, P_WD, P_C, P_WM, P_OUT, P_WS = 32, 34, 36, 40, 42, 44, 46, 48, 50, 54
KARG_REGS = {("s", i) for i in range(32, 56)}


def env(name, default):
    v = os.environ.get(name)
    if v is None:
        return default
    return type(default)(v) if not isinstance(default, str) else v


TS_SEL = env("TS_SEL", "")
NT = env("NT", "nt")


def kargs(a):
    a("s_load_dwordx8 s[48:55], s[0:1], 64")
    a("s_load_dwordx16 s[32:47], s[0:1], 0")


def srd(a, d, base, nbytes):
    a(f"s_mov_b32 s{d}, s{base}")
    a(f"s_and_b32 s{d+1}, s{base+1}, 0xffff")
    a(f"s_mov_b32 s{d+2}, {hex(nbytes)}")
    a(f"s_mov_b32 s{d+3}, 0x20000")


def kstart(a, name):
    a.reset()
    a.raw(f".globl {name}\n.p2align 8\n.type {name},@function\n{name}:")


def role(a, label):
    a.label(label)
    a.vm, a.hist = [], []
    a.lg = [("smem", set(KARG_REGS))]


def kdesc(name, nv, na, ns):
    acc = max(4, (nv + 3) // 4 * 4)
    tot = acc + na if na else nv
    return f""".p2align 6
.amdhsa_kernel {name}
  .amdhsa_next_free_vgpr {tot}
  .amdhsa_next_free_sgpr {ns}
  .amdhsa_accum_offset {acc}
  .amdhsa_group_segment_fixed_size 0
  .amdhsa_kernarg_size 96
  .amdhsa_user_sgpr_count 2
  .amdhsa_user_sgpr_kernarg_segment_ptr 1
  .amdhsa_system_sgpr_workgroup_id_x 1
  .amdhsa_float_denorm_mode_32 3
  .amdhsa_float_denorm_mode_16_64 3
.end_amdhsa_kernel
"""


class Stamp:
    MAXN = 12

    def __init__(self, a, on, kidx):
        self.a, self.on, self.n, self.kidx = a, on, 0, kidx

    def __call__(self, name=None):
        if name is not None and name[0] not in TS_SEL:
            return
        if name is None and TS_SEL and self.n > 0 and self.kidx == 2:
            return
        if self.on and self.n < self.MAXN:
            self.a.raw(f"    s_memrealtime s[{78 + 2*self.n}:{79 + 2*self.n}]")
            self.a.lg.append(("smem", set()))
            self.a.lg_issued += 1
            self.n += 1

    def flush(self, swave, ws_srd, tag):
        if not self.on:
            return
        a = self.a
        a("s_waitcnt lgkmcnt(0)")
        a(f"s_cmp_lg_u32 s{swave}, 0")
        a(f"s_cbranch_scc1 L_nots_{tag}")
        a.pad()
        for i in range(12):
            a(f"v_mov_b32 v{i}, s{78 + 2*i}" if i < self.n else f"v_mov_b32 v{i}, 0")
        a("s_lshl_b32 s75, s2, 6")
        a(f"s_add_u32 s75, s75, {TS + self.kidx * 0x8000}")
        a("v_mov_b32 v12, s75")
        a("s_mov_b64 exec, 1")
        for k in range(3):
            a(f"buffer_store_dwordx4 v[{4*k}:{4*k+3}], v12, s[{ws_srd}:{ws_srd+3}], 0 offen offset:{16*k}")
        a.label(f"L_nots_{tag}")


def neg(x):
    return x[1:] if x.startswith("-") else "-" + x


def run(a, item):
    return item() if callable(item) else a(item)


def weave(a, main, fill, start=0, end=None):
    end = len(main) if end is None else end
    n = max(1, end - start)
    done = 0
    for i, m in enumerate(main):
        run(a, m)
        if i >= start:
            want = min(len(fill), (len(fill) * (i - start + 1) + n - 1) // n)
            while done < want:
                run(a, fill[done])
                done += 1
    while done < len(fill):
        run(a, fill[done])
        done += 1


class Rec:
    def __init__(self):
        self.l = []

    def __call__(self, text):
        self.l.append(text)


def unit_v(a, sx, sy, dst_sig, dst_h, dst_v, hi_bits_reg):
    a(f"s_and_b32 s{hi_bits_reg}, s{sy}, 3")
    a(f"s_bfe_u32 s{dst_h}, s{sy}, 0x10002")
    a(f"s_lshl_b32 s{dst_sig}, s{hi_bits_reg}, 3")
    a(f"s_add_u32 s{dst_sig}, s{dst_sig}, s{sx}")
    a(f"s_sub_u32 s{dst_v}, 64, s{dst_sig}")
    a(f"s_cmp_eq_u32 s{dst_sig}, 0")
    a(f"s_cselect_b32 s{dst_v}, 32, s{dst_v}")
    a(f"s_cmp_eq_u32 s{dst_h}, 0")
    a(f"s_cselect_b32 s{dst_v}, s{dst_sig}, s{dst_v}")
```

```python
from g2common import *

K1_MOD0 = 224
K1_FIL0 = 320
K1_ZERO = 448
K1_GRID = 449
K1_LDS = 32768
XT_ST = env("XT_ST", "sc1")
WPK_ST = env("WPK_ST", "")
N_ST = env("N_ST", "")


def k1(a, ts=False):
    kstart(a, "k1_kernel")
    st = Stamp(a, ts, 0)
    st()
    kargs(a)
    a("v_lshrrev_b32 v1, 6, v0")
    a("v_and_b32 v2, 63, v0")
    a("v_readfirstlane_b32 s16, v1")
    a("s_and_b32 s17, s2, 7")
    a(f"s_cmp_ge_u32 s2, {K1_MOD0}")
    a("s_cbranch_scc1 L_k1_other")
    a("s_lshr_b32 s18, s2, 3")
    a("s_and_b32 s19, s18, 3")
    a("s_lshl_b32 s17, s17, 2")
    a("s_add_u32 s17, s17, s19")
    a("s_lshr_b32 s18, s18, 2")
    a("s_lshl_b32 s20, s18, 7")
    for t in range(1, 7):
        a(f"s_add_u32 s{20+t}, s{19+t}, 128")
        a(f"s_cmp_ge_u32 s{20+t}, 896")
        a(f"s_cselect_b32 s{20+t}, 0, s{20+t}")
    a("v_lshrrev_b32 v3, 3, v2")
    a("v_and_b32 v4, 7, v2")
    a("v_mul_u32_u24 v5, 28672, v3")
    a("v_lshl_add_u32 v5, v4, 4, v5")
    a("s_lshl_b32 s27, s16, 9")
    a("s_add_u32 s27, s27, s17")
    a("s_mul_i32 s27, s27, 896")
    a("v_add_u32 v5, s27, v5")
    a(f"v_add_u32 v6, {8*28672}, v5")
    MT = 72
    mt = lambda vt, ri, ks: MT + ((vt * 2 + ri) * 2 + ks) * 4
    C, S = 104, 112
    a("v_and_b32 v7, 15, v2")
    a("v_lshrrev_b32 v8, 4, v2")
    a("v_cvt_f32_u32 v9, v7")
    a(f"v_mul_f32 v9, {fl(1/64)}, v9")
    a("v_cvt_f32_u32 v10, v8")
    a("v_mul_f32 v10, 4.0, v10")
    a("v_mul_f32 v10, v10, v9")
    for e in range(8):
        K = 16 * (e >> 2) + (e & 3)
        a(f"v_fmamk_f32 v11, v9, {fl(float(K))}, v10")
        a(f"v_cos_f32 v{C+e}, v11")
        a(f"v_sin_f32 v{S+e}, v11")
    srd(a, 8, P_X, X_BYTES)
    XR = 16
    xr = lambda hf, t: XR + (hf * 7 + t) * 4
    loads = [f"buffer_load_dwordx4 {vr(xr(hf,t),4)}, v{5+hf}, s[8:11], s{20+t} offen {NT}" for t in range(7) for hf in range(2)]
    r = Rec()
    srd(r, 12, P_WS, WS_BYTES)

    def cs(vt, e):
        k = (e & 3) * vt
        c, s = f"v{C+e}", f"v{S+e}"
        return [c, neg(s), neg(c), s][k], neg([s, c, neg(s), neg(c)][k])
    for vt in range(2):
        for d in range(4):
            r0, i0 = cs(vt, 2 * d)
            r1, i1 = cs(vt, 2 * d + 1)
            r(f"v_cvt_pk_bf16_f32 v{mt(vt,0,0)+d}, {r0}, {r1}")
            r(f"v_cvt_pk_bf16_f32 v{mt(vt,1,0)+d}, {i0}, {i1}")
    r("s_mov_b32 s28, 0x00010001")
    r("s_mov_b32 s29, 0x00010001")
    r("v_mov_b32 v11, 0xbf803f80")
    for d in range(4):
        r(f"v_cndmask_b32 v{mt(0,1,0)+d}, v{mt(0,1,0)+d}, v11, s[28:29]")
    r("v_and_b32 v12, 1, v2")
    r("v_mul_u32_u24 v12, 0x8000, v12")
    r("v_lshl_or_b32 v12, v12, 16, v12")
    for vt in range(2):
        for ri in range(2):
            for d in range(4):
                r(f"v_xor_b32 v{mt(vt,ri,1)+d}, v{mt(vt,ri,0)+d}, v12")
    r("s_lshl_b32 s30, s16, 4")
    r("v_add_u32 v12, s30, v3")
    r("v_mul_u32_u24 v13, 160, v12")
    r("v_lshl_add_u32 v13, v4, 4, v13")
    r("v_mul_u32_u24 v124, 144, v12")
    r("v_lshl_add_u32 v124, v4, 4, v124")
    r("v_add_u32 v12, s30, v7")
    r("v_mul_u32_u24 v125, 144, v12")
    r("v_lshl_add_u32 v125, v8, 4, v125")
    r("v_lshlrev_b32 v126, 4, v2")
    r("v_lshrrev_b32 v14, 2, v2")
    r("v_mul_u32_u24 v14, 160, v14")
    r("v_and_b32 v11, 3, v2")
    r("v_lshl_add_u32 v14, v11, 3, v14")
    r("s_lshl_b32 s30, s16, 5")
    r("v_add_u32 v14, s30, v14")
    r("v_lshlrev_b32 v15, 16, v7")
    r("v_lshl_add_u32 v15, v8, 10, v15")
    r("s_lshr_b32 s30, s18, 1")
    r("s_lshl_b32 s30, s30, 14")
    r("s_lshl_b32 s31, s16, 12")
    r("s_add_u32 s30, s30, s31")
    r("s_lshr_b32 s31, s17, 2")
    r("s_lshl_b32 s31, s31, 7")
    r("s_add_u32 s30, s30, s31")
    r("s_and_b32 s31, s18, 1")
    r("s_lshl_b32 s31, s31, 6")
    r("s_add_u32 s30, s30, s31")
    r("s_and_b32 s31, s17, 3")
    r("s_lshl_b32 s31, s31, 4")
    r("s_add_u32 s30, s30, s31")
    r(f"s_add_u32 s30, s30, {NWS}")
    r(f"s_add_u32 s31, s30, {16*65536}")
    r("s_lshl_b32 s56, s17, 2")
    r("s_add_u32 s56, s56, s16")
    r(f"s_mul_i32 s56, s56, {RT}")
    r("s_lshl_b32 s57, s18, 11")
    r("s_add_u32 s56, s56, s57")
    r(f"s_add_u32 s56, s56, {XT}")
    AC = 120
    r("s_mov_b32 s58, 0x3f803f80")
    for k in range(4):
        r(f"v_mov_b32 v{AC+k}, 0")
    weave(a, loads, r.l)
    U = 104
    XC = 128
    for t in range(7):
        for hf in range(2):
            if t == 0:
                a(f"ds_write_b128 v124, {vr(xr(hf,0),4)} offset:{10240 + hf*8*144}")
            for d in range(4):
                rr = xr(hf, t) + d
                a(f"v_dot2c_f32_bf16 v{AC+2*hf}, s58, v{rr}")
                a(f"v_dot2c_f32_bf16 v{AC+2*hf+1}, v{rr}, v{rr}")
                if t == 0:
                    a(f"v_lshlrev_b32 v{U+hf*8+2*d}, 16, v{rr}")
                    a(f"v_and_b32 v{U+hf*8+2*d+1}, 0xffff0000, v{rr}")
        if t == 0:
            for k in range(2):
                a(f"ds_read_b128 {vr(XC+4*k,4)}, v125 offset:{10240 + k*64}")
        if t == 2:
            for k in range(2):
                a(f"buffer_store_dwordx4 {vr(XC+4*k,4)}, v126, s[12:15], s56 offen offset:{k*1024} {XT_ST}")
    st()
    for m in ("quad_perm:[1,0,3,2]", "quad_perm:[2,3,0,1]", "row_half_mirror"):
        for k in range(4):
            a(f"v_add_f32_dpp v{AC+k}, v{AC+k}, v{AC+k} {m} {DPPM}")
    for hf in range(2):
        s_, q_ = AC + 2 * hf, AC + 2 * hf + 1
        a(f"v_mul_f32 v{s_}, {fl(1/448)}, v{s_}")
        a(f"v_mul_f32 v{q_}, {fl(1/448)}, v{q_}")
    for hf in range(2):
        s_, q_ = AC + 2 * hf, AC + 2 * hf + 1
        a(f"v_fma_f32 v{q_}, -v{s_}, v{s_}, v{q_}")
    for hf in range(2):
        a(f"v_max_f32 v{AC+2*hf+1}, 0, v{AC+2*hf+1}")
    for hf in range(2):
        a(f"v_add_f32 v{AC+2*hf+1}, {fl(1e-5)}, v{AC+2*hf+1}")
    for hf in range(2):
        a(f"v_rsq_f32 v{AC+2*hf+1}, v{AC+2*hf+1}")
    for hf in range(2):
        s_, q_ = AC + 2 * hf, AC + 2 * hf + 1
        a(f"v_mul_f32 v{s_}, v{s_}, v{q_}")
    for hf in range(2):
        s_, q_ = AC + 2 * hf, AC + 2 * hf + 1
        for e in range(8):
            a(f"v_fma_f32 v{U+hf*8+e}, v{U+hf*8+e}, v{q_}, -v{s_}")
        for d in range(4):
            a(f"v_cvt_pk_bf16_f32 v{XR+hf*4+d}, v{U+hf*8+2*d}, v{U+hf*8+2*d+1}")
        a(f"ds_write_b128 v13, {vr(XR+hf*4,4)} offset:{hf*8*160}")
    a("s_waitcnt lgkmcnt(0)")
    a("s_barrier")
    AF = 24
    for ks in range(2):
        for rho in range(2):
            a(f"ds_read_b64_tr_b16 {vr(AF+ks*4+rho*2,2)}, v14 offset:{(32*ks+16*rho)*160}")
    ACC = 32
    for vt in range(2):
        for ks in range(2):
            for ri in range(2):
                d = vr(ACC + (vt * 2 + ri) * 4, 4)
                a(f"{MFMA} {d}, {vr(AF+ks*4,4)}, {vr(mt(vt,ri,ks),4)}, {d if ks else 0}")
    O = 48
    for vt in range(2):
        for r_ in range(4):
            a(f"v_cvt_pk_bf16_f32 v{O+vt*4+r_}, v{ACC+vt*8+r_}, v{ACC+vt*8+4+r_}")
        a(f"buffer_store_dwordx4 {vr(O+vt*4,4)}, v15, s[12:15], s{30+vt} offen {N_ST}")
    st()
    st.flush(16, 12, "k1")
    a("s_endpgm")

    role(a, "L_k1_other")
    a(f"s_cmp_ge_u32 s2, {K1_FIL0}")
    a("s_cbranch_scc1 L_k1_fil")
    a(f"s_sub_u32 s18, s2, {K1_MOD0}")
    a("s_lshr_b32 s18, s18, 3")
    a("s_lshr_b32 s19, s18, 1")
    a("s_lshl_b32 s19, s19, 3")
    a("s_add_u32 s19, s19, s17")
    a("s_cmp_ge_u32 s19, 42")
    a("s_cbranch_scc1 L_k1_end")
    a("s_and_b32 s18, s18, 1")
    a("s_lshl_b32 s17, s19, 1")
    a("s_add_u32 s17, s17, s18")
    a("v_lshrrev_b32 v3, 2, v0")
    a("v_and_b32 v4, 3, v0")
    a("v_mul_u32_u24 v5, 5376, v3")
    a("v_lshl_add_u32 v5, v4, 4, v5")
    a("s_lshl_b32 s18, s17, 6")
    a("v_add_u32 v5, s18, v5")
    a("v_lshlrev_b32 v6, 1, v3")
    for z in range(7):
        a(f"v_mov_b32 v{44+z}, 0")
    for e in range(8):
        a(f"v_mov_b32 v{8+e}, 0")
    srd(a, 24, P_C, 896)
    srd(a, 8, P_WM, WM_BYTES)
    for z in range(7):
        a(f"buffer_load_short_d16_hi v{44+z}, v6, s[24:27], 0 offen offset:{z*128}")
    for z in range(7):
        a(f"s_mov_b32 s19, {z*64*5376}")
        a(f"buffer_load_dwordx4 {vr(16+4*z,4)}, v5, s[8:11], s19 offen {NT}")
    srd(a, 12, P_WS, WS_BYTES)
    for z in range(7):
        c = 44 + z
        a(f"v_and_b32 v{c}, 0xffff0000, v{c}")
        a(f"v_mul_f32 v60, {fl(-math.log2(math.e))}, v{c}")
        a("v_exp_f32 v60, v60")
        a("v_add_f32 v60, 1.0, v60")
        a("v_rcp_f32 v60, v60")
        a(f"v_mul_f32 v60, v60, v{c}")
        a(f"v_cvt_pk_bf16_f32 v{c}, v60, 0")
        a(f"v_lshlrev_b32 v{52+z}, 16, v{c}")
    a("s_mul_i32 s18, s17, 37")
    a("s_lshr_b32 s18, s18, 9")
    a("s_mul_i32 s28, s18, 14")
    a("s_sub_u32 s28, s17, s28")
    a("s_lshl_b32 s28, s28, 5")
    a("v_and_b32 v61, 31, v2")
    a("v_add_u32 v61, s28, v61")
    a("v_bfe_u32 v62, v61, 4, 2")
    a("v_bfe_u32 v63, v61, 6, 2")
    a("v_lshl_add_u32 v62, v62, 2, v63")
    a("v_and_b32 v63, 7, v61")
    a("v_lshl_add_u32 v62, v62, 3, v63")
    a("v_lshlrev_b32 v62, 5, v62")
    a("v_lshrrev_b32 v63, 8, v61")
    a("v_lshl_add_u32 v62, v63, 3, v62")
    a("v_bfe_u32 v63, v61, 3, 1")
    a("v_lshl_add_u32 v62, v63, 2, v62")
    a("v_lshlrev_b32 v61, 1, v61")
    for z in range(7):
        for d in range(4):
            a(f"v_dot2c_f32_bf16 v{8+2*d}, v{44+z}, v{16+4*z+d}")
            a(f"v_dot2c_f32_bf16 v{9+2*d}, v{52+z}, v{16+4*z+d}")
    a("v_lshrrev_b32 v3, 4, v0")
    a("v_lshlrev_b32 v3, 7, v3")
    a("v_lshl_add_u32 v3, v4, 5, v3")
    for m in ("row_ror:4", "row_ror:8"):
        for e in range(8):
            a(f"v_add_f32_dpp v{8+e}, v{8+e}, v{8+e} {m} {DPPM}")
    a("s_mov_b32 exec_lo, 0x000f000f")
    a("s_mov_b32 exec_hi, 0x000f000f")
    a("ds_write_b128 v3, v[8:11]")
    a("ds_write_b128 v3, v[12:15] offset:16")
    a("s_mov_b64 exec, -1")
    a("s_waitcnt lgkmcnt(0)")
    a("s_barrier")
    a("s_cmp_lg_u32 s16, 0")
    a("s_cbranch_scc1 L_k1_end")
    a("v_lshlrev_b32 v3, 2, v2")
    for p in range(4):
        a(f"ds_read2st64_b32 {vr(16+2*p,2)}, v3 offset0:{2*p} offset1:{2*p+1}")
    for st_ in (4, 2, 1):
        for k in range(st_):
            a(f"v_add_f32 v{16+k}, v{16+k}, v{16+k+st_}")
    a("v_mov_b32 v17, v16")
    a("v_permlane32_swap_b32 v16, v17")
    a("v_add_f32 v16, v16, v17")
    a("v_cvt_pk_bf16_f32 v16, v16, 0")
    a("v_lshlrev_b32 v16, 16, v16")
    a("v_add_f32 v17, 1.0, v16")
    a("v_cvt_pk_bf16_f32 v17, v17, 0")
    a("v_lshlrev_b32 v17, 16, v17")
    a(f"v_mul_f32 v18, {fl(1/(2048*448))}, v16")
    a("s_cmp_eq_u32 s18, 1")
    a("s_cselect_b64 s[28:29], -1, 0")
    a("s_cmp_eq_u32 s18, 4")
    a("s_cselect_b64 s[30:31], -1, 0")
    a("s_or_b64 s[28:29], s[28:29], s[30:31]")
    a("v_cndmask_b32 v16, v16, v17, s[28:29]")
    a("s_cmp_eq_u32 s18, 2")
    a("s_cselect_b64 s[28:29], -1, 0")
    a("v_cndmask_b32 v16, v16, v18, s[28:29]")
    a("s_lshl_b32 s19, s17, 7")
    a(f"s_add_u32 s19, s19, {MOD}")
    a("s_mov_b32 exec_hi, 0")
    a("s_cmp_gt_u32 s18, 1")
    a("s_cbranch_scc1 L_k1_m2")
    a("s_xor_b32 s19, s18, 1")
    a("s_lshl_b32 s19, s19, 4")
    a(f"s_add_u32 s19, s19, {MODK2}")
    a("buffer_store_dword v16, v62, s[12:15], s19 offen")
    if ts:
        st.n = 1
        st()
        st.flush(16, 12, "k1m")
    a("s_endpgm")
    a.label("L_k1_m2")
    a("buffer_store_dword v16, v3, s[12:15], s19 offen")
    a("s_sub_u32 s19, s18, 3")
    a("s_cmp_gt_u32 s19, 1")
    a("s_cbranch_scc1 L_k1_end")
    a("s_xor_b32 s19, s19, 1")
    a("s_lshl_b32 s19, s19, 10")
    a(f"s_add_u32 s19, s19, {AUXB}")
    a("buffer_store_short_d16_hi v16, v61, s[12:15], s19 offen")
    if ts:
        st.n = 1
        st()
        st.flush(16, 12, "k1m2")
    a.label("L_k1_end")
    a("s_endpgm")

    role(a, "L_k1_fil")
    a(f"s_cmp_ge_u32 s2, {K1_ZERO}")
    a("s_cbranch_scc1 L_k1_zero")
    a(f"s_sub_u32 s18, s2, {K1_FIL0}")
    a("s_lshr_b32 s18, s18, 3")
    unit_v(a, 17, 18, 26, 24, 27, 19)
    a("s_lshr_b32 s25, s18, 3")
    a("s_lshl_b32 s28, s25, 2")
    a("s_add_u32 s28, s28, s16")
    a("s_lshl_b32 s28, s28, 8")
    a("s_add_u32 s28, s28, s27")
    a("v_lshrrev_b32 v3, 5, v2")
    a("v_lshlrev_b32 v3, 6, v3")
    a("v_add_u32 v3, s28, v3")
    a("v_and_b32 v4, 31, v2")
    a("v_min_u32 v4, 29, v4")
    a("v_lshlrev_b32 v4, 4, v4")
    a("s_movk_i32 s29, 450")
    for part in range(2):
        for pr in range(2):
            d = 8 + part * 2 + pr
            if part == 0:
                a(f"v_add_u32 v5, {128*pr}, v3")
            else:
                a(f"v_sub_u32 v5, {2048 - 128*pr}, v3")
                a("v_and_b32 v5, 0x7ff, v5")
            a("v_mul_u32_u24 v5, s29, v5")
            a("v_and_b32 v5, -16, v5")
            a(f"v_add_u32 v{d}, v5, v4")
    a("s_lshl_b32 s30, s16, 13")
    srd(a, 8, P_WR, W_BYTES)
    srd(a, 20, P_WI, W_BYTES)
    for arr in range(2):
        for part in range(2):
            for pr in range(2):
                a(f"s_add_u32 m0, s30, {arr*4096 + part*2048 + pr*1024}")
                a(f"buffer_load_dwordx4 v{8+part*2+pr}, s[{8+12*arr}:{11+12*arr}], 0 offen {NT} lds")
    srd(a, 12, P_WS, WS_BYTES)
    a("s_lshl_b32 s31, s27, 1")
    a("s_and_b32 s56, s31, 15")
    a("s_add_u32 s56, s56, s30")
    a("s_sub_u32 s57, 0, s31")
    a("s_and_b32 s57, s57, 15")
    a("s_add_u32 s57, s57, s30")
    a("s_add_u32 s57, s57, 2048 + 896")
    a("v_mul_u32_u24 v3, 14, v2")
    a("v_mov_b32 v20, 0x80000000")
    for q in range(4):
        a(f"v_add_u32 v4, {2*q}, v3")
        a("v_add_u32 v5, s56, v4")
        a("v_sub_u32 v6, s57, v4")
        a("v_cmp_lt_u32 vcc, 448, v4")
        a(f"v_cndmask_b32 v{12+q}, v5, v6, vcc")
        a(f"v_cndmask_b32 v{16+q}, 0, v20, vcc")
    a("v_lshrrev_b32 v3, 4, v2")
    a("v_lshlrev_b32 v3, 11, v3")
    a("v_and_b32 v4, 15, v2")
    a("v_lshl_add_u32 v3, v4, 4, v3")
    a("s_and_b32 s28, s18, 7")
    a("s_lshl_b32 s28, s28, 3")
    a("s_add_u32 s28, s28, s17")
    a("s_lshl_b32 s28, s28, 13")
    a("s_lshl_b32 s29, s25, 10")
    a("s_add_u32 s28, s28, s29")
    a("s_lshl_b32 s29, s16, 8")
    a("s_add_u32 s28, s28, s29")
    a(f"s_add_u32 s28, s28, {WPK}")
    a("s_waitcnt vmcnt(0)")
    st.n = 1
    st()
    for q in range(4):
        for r_ in range(4):
            a(f"ds_read_u16 v{24+q*8+r_}, v{12+q} offset:{r_*512}")
            a(f"ds_read_u16 v{28+q*8+r_}, v{12+q} offset:{4096+r_*512}")
    for q in range(4):
        for r_ in range(4):
            a(f"v_lshl_or_b32 v{56+q*4+r_}, v{28+q*8+r_}, 16, v{24+q*8+r_}")
            a(f"v_xor_b32 v{56+q*4+r_}, v{56+q*4+r_}, v{16+q}")
        a(f"buffer_store_dwordx4 {vr(56+q*4,4)}, v3, s[12:15], s28 offen {WPK_ST}")
        a(f"s_add_u32 s28, s28, {64*8192}")
    st()
    st.flush(16, 12, "k1f")
    a("s_endpgm")

    role(a, "L_k1_zero")
    a(f"s_cmp_ge_u32 s2, {K1_GRID}")
    a("s_cbranch_scc1 L_k1_end")
    srd(a, 12, P_WS, WS_BYTES)
    a("v_lshlrev_b32 v3, 4, v0")
    for k in range(4):
        a(f"v_mov_b32 v{4+k}, 0")
    for k in range(4):
        a(f"s_mov_b32 s19, {FLAGS + k*4096}")
        a("buffer_store_dwordx4 v[4:7], v3, s[12:15], s19 offen")
    a("s_endpgm")
    return kdesc("k1_kernel", a.maxv + 1, 0, 102)
```

```python
from g2common import *

K2_LDS = 16384
Z_ST = env("Z_ST", "")
WARM = env("WARM", 1)


def k2(a, ts=False):
    kstart(a, "k2_kernel")
    st = Stamp(a, ts, 1)
    st()
    kargs(a)
    a("s_cmp_ge_u32 s2, 256")
    a("s_cbranch_scc1 L_k2_end")
    a("v_lshrrev_b32 v1, 6, v0")
    a("v_and_b32 v2, 63, v0")
    a("v_readfirstlane_b32 s16, v1")
    a("v_and_b32 v7, 15, v2")
    a("v_lshrrev_b32 v8, 4, v2")
    a("s_and_b32 s17, s2, 7")
    a("s_lshr_b32 s18, s2, 3")
    unit_v(a, 17, 18, 26, 24, 27, 19)
    a("s_lshr_b32 s25, s18, 3")
    a("v_lshrrev_b32 v9, 1, v7")
    a("s_lshl_b32 s28, s16, 4")
    a("v_lshl_add_u32 v13, v8, 3, v9")
    a("v_lshlrev_b32 v13, 5, v13")
    a("s_lshl_b32 s30, s16, 10")
    a(f"s_add_u32 s30, s30, {MODK2}")
    a("v_add_u32 v11, 4, v8")
    a("v_min_u32 v11, 6, v11")
    a("v_lshrrev_b32 v15, 2, v7")
    a("v_lshlrev_b32 v15, 7, v15")
    a("v_and_b32 v16, 3, v7")
    a("v_lshl_add_u32 v15, v16, 4, v15")
    for dst, j in ((17, 8), (18, 11)):
        a(f"v_lshrrev_b32 v16, 1, v{j}")
        a(f"v_lshl_add_u32 v{dst}, v16, 14, v15")
        a(f"v_and_b32 v16, 1, v{j}")
        a(f"v_lshl_add_u32 v{dst}, v16, 6, v{dst}")
    a("s_lshl_b32 s29, s26, 16")
    a("s_lshl_b32 s31, s16, 12")
    a("s_add_u32 s29, s29, s31")
    a(f"s_add_u32 s29, s29, {NWS}")
    a("v_lshlrev_b32 v14, 4, v2")
    a("s_lshl_b32 s20, s2, 13")
    a("s_lshl_b32 s21, s16, 11")
    a("s_add_u32 s20, s20, s21")
    a(f"s_add_u32 s20, s20, {WPK}")
    a("v_lshl_add_u32 v10, v8, 6, v9")
    a("v_add_u32 v10, s28, v10")
    a("v_cvt_f32_u32 v24, s25")
    a(f"v_mul_f32 v24, {fl(-1/448)}, v24")
    a("v_cvt_f32_u32 v25, v10")
    a("v_and_b32 v26, 1, v7")
    a("v_cvt_f32_u32 v26, v26")
    a(f"v_mul_f32 v26, {fl(-0.25)}, v26")
    a("v_fma_f32 v25, v25, v24, v26")
    a(f"s_mov_b32 s22, {fl(0.25)}")
    a(f"s_mov_b32 s23, {fl(-0.25)}")
    a("s_cmp_eq_u32 s24, 0")
    a("s_cselect_b32 s22, s22, s23")
    a("s_cmp_eq_u32 s27, 32")
    a("s_cselect_b32 s22, 0, s22")
    a("s_cselect_b32 s23, 0xffff0000, -1")
    a("s_cmp_eq_u32 s27, 0")
    a("s_cselect_b32 s23, 0xffff, s23")
    a(f"s_cselect_b32 s72, {fl(64.0)}, 0")
    T0, T1 = 216, 220
    for jh in range(2):
        for tau in range(2):
            i = jh * 2 + tau
            a(f"v_fmamk_f32 v26, v24, {fl(float(8*tau+256*jh))}, v25")
            a(f"v_add_f32 v27, s22, v26")
            a(f"v_cos_f32 v{T0+i}, v26")
            a(f"v_cos_f32 v{T1+i}, v27")
    srd(a, 12, P_WS, WS_BYTES)
    CA, SA = 208, 212
    DB = 64
    db = lambda bt, aql, jh: DB + ((aql * 2 + jh) * 2 + bt) * 4
    WP = 232
    loads = [f"buffer_load_dwordx4 {vr(CA,4)}, v13, s[12:15], s30 offen",
             f"buffer_load_dwordx4 {vr(SA,4)}, v13, s[12:15], s30 offen offset:16"]
    for aql in range(4):
        for jh in range(2):
            for bt in range(2):
                loads.append(f"buffer_load_dwordx4 {vr(db(bt,aql,jh),4)}, v{17+jh}, s[12:15], s29 offen offset:{aql*1024+bt*512}")
    loads += [f"buffer_load_dwordx4 {vr(WP+4*k,4)}, v14, s[12:15], s20 offen offset:{k*1024}" for k in range(2)]
    r = Rec()
    MRE, MIM = 128, 144
    r("v_add_u32 v19, s28, v7")
    r("v_cvt_f32_u32 v24, v19")
    r(f"v_mul_f32 v24, {fl(1/64)}, v24")
    r("v_cvt_f32_u32 v30, v8")
    r("v_mul_f32 v30, 4.0, v30")
    r("v_mul_f32 v25, v30, v24")
    r("v_and_b32 v31, 1, v2")
    r("v_mul_u32_u24 v31, 0x8000, v31")
    r("v_lshl_or_b32 v31, v31, 16, v31")
    for ks in range(2):
        for e in range(4):
            r(f"v_fmamk_f32 v26, v24, {fl(float(16*ks+e))}, v25")
            r("v_cos_f32 v27, v26")
            r("v_sin_f32 v28, v26")
            r("s_nop 0")
            r(f"v_cvt_pk_bf16_f32 v{MRE+ks*4+e}, v27, v28")
            r(f"v_cvt_pk_bf16_f32 v{MIM+ks*4+e}, -v28, v27")
            r(f"v_xor_b32 v{MRE+8+ks*4+e}, v{MRE+ks*4+e}, v31")
            r(f"v_xor_b32 v{MIM+8+ks*4+e}, v{MIM+ks*4+e}, v31")
    r.l = [x for x in r.l if x != "s_nop 0"]
    FC, FS, IC, IS = 160, 168, 176, 184
    TT = 20
    r("v_lshlrev_b32 v24, 6, v7")
    r("v_add_u32 v24, s27, v24")
    r("v_cvt_f32_u32 v24, v24")
    r(f"v_mul_f32 v24, {fl(1/2048)}, v24")
    r("v_mul_f32 v25, v30, v24")
    r("s_mov_b32 s73, 0x80000000")
    for d in range(4):
        for hlf in range(2):
            e = 2 * d + hlf
            K = 16 * (e >> 2) + (e & 3)
            r(f"v_fmamk_f32 v26, v24, {fl(float(K))}, v25")
            r(f"v_cos_f32 v{TT+hlf}, v26")
            r(f"v_sin_f32 v{TT+2+hlf}, v26")
        r(f"v_cvt_pk_bf16_f32 v{FC+d}, v{TT}, v{TT+1}")
        r(f"v_cvt_pk_bf16_f32 v{FS+d}, v{TT+2}, v{TT+3}")
        r(f"v_xor_b32 v{FC+4+d}, s73, v{FC+d}")
        r(f"v_xor_b32 v{FS+4+d}, s73, v{FS+d}")
    r("v_cvt_f32_u32 v26, s27")
    r(f"v_fmamk_f32 v26, v30, {fl(64.0)}, v26")
    for bt in range(2):
        r(f"v_add_u32 v24, {16*bt}, v7")
        r("v_cvt_f32_u32 v24, v24")
        r(f"v_mul_f32 v24, {fl(1/2048)}, v24")
        r("v_mul_f32 v25, v24, v26")
        for d in range(2):
            for hlf in range(2):
                r(f"v_fmamk_f32 v27, v24, {fl(float(64*(2*d+hlf)))}, v25")
                r(f"v_cos_f32 v{TT+hlf}, v27")
                r(f"v_sin_f32 v{TT+2+hlf}, v27")
            r(f"v_cvt_pk_bf16_f32 v{IC+bt*4+d}, v{TT}, v{TT+1}")
            r(f"v_cvt_pk_bf16_f32 v{IS+bt*4+d}, v{TT+2}, v{TT+3}")
            r(f"v_xor_b32 v{IC+bt*4+2+d}, v{IC+bt*4+d}, v31")
            r(f"v_xor_b32 v{IS+bt*4+2+d}, v{IS+bt*4+d}, v31")
    for k in range(8):
        m = 0x00030003 << (2 * k)
        r(f"s_mov_b32 s{56+2*k}, {hex(m)}")
        r(f"s_mov_b32 s{57+2*k}, {hex(m)}")
    r("v_add_u32 v10, s21, v14")
    r("v_lshrrev_b32 v11, 1, v8")
    r("v_lshl_add_u32 v11, v11, 4, v7")
    r("v_lshlrev_b32 v11, 4, v11")
    r("v_and_b32 v12, 1, v8")
    r("v_lshl_add_u32 v11, v12, 3, v11")
    r("v_add_u32 v11, s21, v11")
    r("v_lshlrev_b32 v12, 16, v7")
    r("v_lshl_add_u32 v12, v8, 12, v12")
    if WARM:
        r("s_lshl_b32 s4, s18, 2")
        r("s_add_u32 s4, s4, s16")
        warm_code(r)
    weave(a, loads, r.l)
    a("s_lshl_b32 s30, s16, 14")
    a("s_lshl_b32 s31, s17, 9")
    a("s_add_u32 s30, s30, s31")
    a("s_lshl_b32 s31, s25, 7")
    a("s_add_u32 s30, s30, s31")
    a("s_lshl_b32 s31, s19, 5")
    a("s_add_u32 s30, s30, s31")
    a("s_lshl_b32 s31, s24, 4")
    a("s_add_u32 s30, s30, s31")
    a(f"s_add_u32 s30, s30, {ZWS}")
    a(f"s_add_u32 s31, s30, {16*65536}")
    a("s_mov_b32 s8, -1")
    a("s_mov_b32 s9, 0xffff")
    for k in (2, 3):
        a(f"v_cndmask_b32 v{CA+k}, 0, v{CA+k}, s[8:9]")
        a(f"v_cndmask_b32 v{SA+k}, 0, v{SA+k}, s[8:9]")
    PW = 224
    RS = 192
    for i in range(4):
        a(f"v_mul_f32 v26, v{CA+i}, v{T0+i}")
        a(f"v_mul_f32 v27, v{CA+i}, v{T1+i}")
        a(f"v_cvt_pk_bf16_f32 v{PW+i}, v26, v27")
        a(f"v_and_b32 v{PW+i}, s23, v{PW+i}")
    for tau in range(2):
        a(f"v_mul_f32 v26, v{SA+tau}, v{T0+tau}")
        a(f"v_mul_f32 v27, v{SA+2+tau}, v{T0+2+tau}")
        a("v_mul_f32 v26, s72, v26")
        a("v_mul_f32 v27, s72, v27")
        a(f"v_cvt_pk_bf16_f32 v{RS+tau*4}, v26, v27")
        a(f"v_lshlrev_b32 v28, 16, v{RS+tau*4}")
        a(f"v_and_b32 v29, 0xffff0000, v{RS+tau*4}")
        a("v_sub_f32 v26, v26, v28")
        a("v_sub_f32 v27, v27, v29")
        a(f"v_cvt_pk_bf16_f32 v{RS+tau*4+1}, v26, v27")
        a(f"v_mov_b32 v{RS+tau*4+2}, 0")
        a(f"v_mov_b32 v{RS+tau*4+3}, 0")
    ONE = 200
    for r_ in range(4):
        a(f"v_mov_b32 v{ONE+r_}, 0x3f803f80")
    CI = 240
    for tau in range(2):
        a(f"{MFMA} {vr(CI+tau*4,4)}, {vr(RS+tau*4,4)}, {vr(ONE,4)}, 0")
    RM = 32
    rm = lambda tau, z, jh: RM + ((tau * 2 + z) * 2 + jh) * 4
    for tau in range(2):
        for z in range(2):
            for jh in range(2):
                for r_ in range(4):
                    k = 4 * z + r_
                    a(f"v_cndmask_b32 v{rm(tau,z,jh)+r_}, 0, v{PW+jh*2+tau}, s[{56+2*k}:{57+2*k}]")
    st()
    AC = 208
    for tau in range(2):
        for z in range(2):
            for jh in range(2):
                for bt in range(2):
                    d = vr(AC + (tau * 2 + bt) * 4, 4)
                    c = vr(CI + tau * 4, 4) if (z == 0 and jh == 0) else d
                    a(f"{MFMA} {d}, {vr(rm(tau,z,jh),4)}, {vr(db(bt,2*tau+z,jh),4)}, {c}")
    st()
    for tau in range(2):
        for bt in range(2):
            s_ = AC + (tau * 2 + bt) * 4
            o = 224 + (tau * 2 + bt) * 2
            a(f"v_cvt_pk_bf16_f32 v{o}, v{s_}, v{s_+1}")
            a(f"v_cvt_pk_bf16_f32 v{o+1}, v{s_+2}, v{s_+3}")
            a(f"ds_write_b64 v11, {vr(o,2)} offset:{bt*1024+tau*512}")
    WR, WI = 192, 200
    for e in range(8):
        a(f"v_lshlrev_b32 v{WR+e}, 16, v{WP+e}")
        a(f"v_and_b32 v{WI+e}, 0xffff0000, v{WP+e}")
    if WARM:
        a.raw("    buffer_load_dword v249, v248, s[4:7], 0 offen")
    a("s_waitcnt lgkmcnt(0)")
    a("s_barrier")
    TA = 64
    for ks in range(4):
        for bt in range(2):
            a(f"ds_read_b128 {vr(TA+(ks*2+bt)*4,4)}, v14 offset:{(ks*2+bt)*1024}")
    X1_ = 96
    for ks in range(4):
        for bt in range(2):
            for ri, M in enumerate((MRE, MIM)):
                d = vr(X1_ + (ri * 2 + bt) * 4, 4)
                a(f"{MFMA} {d}, {vr(TA+(ks*2+bt)*4,4)}, {vr(M+ks*4,4)}, {d if ks else 0}")
    BRE, BIM, BN = 112, 116, 120
    for k in range(4):
        a(f"v_cvt_pk_bf16_f32 v{BRE+k}, v{X1_+2*k}, v{X1_+2*k+1}")
    for k in range(4):
        a(f"v_cvt_pk_bf16_f32 v{BIM+k}, v{X1_+8+2*k}, v{X1_+8+2*k+1}")
    X2 = 32
    for ut in range(2):
        a(f"{MFMA} {vr(X2+ut*4,4)}, {vr(FC+ut*4,4)}, {vr(BRE,4)}, 0")
        a(f"v_cvt_pk_bf16_f32 v{BN+2*ut}, -v{X1_+4*ut}, -v{X1_+4*ut+1}")
        a(f"v_cvt_pk_bf16_f32 v{BN+2*ut+1}, -v{X1_+4*ut+2}, -v{X1_+4*ut+3}")
    for ut in range(2):
        a(f"{MFMA} {vr(X2+8+ut*4,4)}, {vr(FC+ut*4,4)}, {vr(BIM,4)}, 0")
    for ut in range(2):
        a(f"{MFMA} {vr(X2+ut*4,4)}, {vr(FS+ut*4,4)}, {vr(BIM,4)}, {vr(X2+ut*4,4)}")
        a(f"{MFMA} {vr(X2+8+ut*4,4)}, {vr(FS+ut*4,4)}, {vr(BN,4)}, {vr(X2+8+ut*4,4)}")
    YR, YI = 48, 56
    for e in range(8):
        a(f"v_mul_f32 v{YR+e}, v{X2+e}, v{WR+e}")
        a(f"v_mul_f32 v{YI+e}, v{X2+e}, v{WI+e}")
        a(f"v_fma_f32 v{YR+e}, -v{X2+8+e}, v{WI+e}, v{YR+e}")
        a(f"v_fmac_f32 v{YI+e}, v{X2+8+e}, v{WR+e}")
    for k in range(4):
        a(f"v_cvt_pk_bf16_f32 v{BRE+k}, v{YR+2*k}, v{YR+2*k+1}")
    for k in range(4):
        a(f"v_cvt_pk_bf16_f32 v{BIM+k}, v{YI+2*k}, v{YI+2*k+1}")
    Y1 = 96
    for bt in range(2):
        a(f"{MFMA} {vr(Y1+bt*4,4)}, {vr(BRE,4)}, {vr(IC+bt*4,4)}, 0")
        a(f"v_cvt_pk_bf16_f32 v{BN+2*bt}, -v{YI+4*bt}, -v{YI+4*bt+1}")
        a(f"v_cvt_pk_bf16_f32 v{BN+2*bt+1}, -v{YI+4*bt+2}, -v{YI+4*bt+3}")
        a(f"{MFMA} {vr(Y1+8+bt*4,4)}, {vr(BRE,4)}, {vr(IS+bt*4,4)}, 0")
    for bt in range(2):
        a(f"{MFMA} {vr(Y1+8+bt*4,4)}, {vr(BIM,4)}, {vr(IC+bt*4,4)}, {vr(Y1+8+bt*4,4)}")
        a(f"{MFMA} {vr(Y1+bt*4,4)}, {vr(BN,4)}, {vr(IS+bt*4,4)}, {vr(Y1+bt*4,4)}")
    for bt in range(2):
        for r_ in range(4):
            a(f"v_cvt_pk_bf16_f32 v{224+bt*4+r_}, v{Y1+bt*4+r_}, -v{Y1+8+bt*4+r_}")
        a(f"ds_write_b128 v10, {vr(224+bt*4,4)} offset:{8192+bt*1024}")
    a("s_waitcnt lgkmcnt(0)")
    a("s_barrier")
    for bt in range(2):
        for ks in range(4):
            a(f"ds_read_b128 {vr(TA+(ks*2+bt)*4,4)}, v14 offset:{8192+(ks*2+bt)*1024}")
    ZC = 32
    for bt in range(2):
        for ks in range(4):
            for ri, M in enumerate((MRE, MIM)):
                d = vr(ZC + (ri * 2 + bt) * 4, 4)
                a(f"{MFMA} {d}, {vr(M+ks*4,4)}, {vr(TA+(ks*2+bt)*4,4)}, {d if ks else 0}")
    for bt in range(2):
        for r_ in range(4):
            a(f"v_cvt_pk_bf16_f32 v{224+bt*4+r_}, v{ZC+bt*4+r_}, -v{ZC+8+bt*4+r_}")
        a(f"buffer_store_dwordx4 {vr(224+bt*4,4)}, v12, s[12:15], s{30+bt} offen {Z_ST}")
    st()
    st.flush(16, 12, "k2")
    a.label("L_k2_end")
    a("s_endpgm")
    return kdesc("k2_kernel", 250, 0, 102)


def warm_code(a):
    a("s_cmp_ge_u32 s4, 104")
    a("s_cselect_b32 s6, 2, 0")
    a("s_cmp_ge_u32 s4, 52")
    a("s_cselect_b32 s7, 1, 0")
    a("s_max_u32 s6, s6, s7")
    a("s_mul_i32 s7, s6, 52")
    a("s_sub_u32 s4, s4, s7")
    a("s_lshr_b32 s7, s17, 1")
    a("s_mul_i32 s7, s7, 25")
    a("s_add_u32 s7, s7, s4")
    a("s_sub_u32 s5, s7, 98")
    a("s_cmp_ge_u32 s7, 98")
    a("s_cselect_b32 s7, s5, s7")
    a("s_lshl_b32 s7, s7, 6")
    a("v_add_u32 v248, s7, v2")
    a("v_mul_u32_u24 v249, 4682, v248")
    a("v_lshrrev_b32 v249, 16, v249")
    a("v_mul_u32_u24 v249, 14, v249")
    a("v_add_u32 v248, v248, v249")
    a("s_and_b32 s5, s17, 1")
    a("s_mul_i32 s5, s5, 14")
    a("v_add_u32 v248, s5, v248")
    a("s_mul_i32 s5, s17, 25")
    a("s_add_u32 s5, s5, s4")
    a("s_lshl_b32 s5, s5, 6")
    a("v_add_u32 v249, s5, v2")
    a("s_cmp_eq_u32 s6, 2")
    a("s_cselect_b64 vcc, -1, 0")
    a("v_cndmask_b32 v248, v248, v249, vcc")
    a("v_lshlrev_b32 v248, 7, v248")
    a(f"s_cselect_b32 s4, s{P_WD}, s{P_WG}")
    a(f"s_cselect_b32 s5, s{P_WD+1}, s{P_WG+1}")
    a("s_cmp_eq_u32 s6, 1")
    a(f"s_cselect_b32 s4, s{P_WU}, s4")
    a(f"s_cselect_b32 s5, s{P_WU+1}, s5")
    a("s_and_b32 s5, s5, 0xffff")
    a(f"s_mov_b32 s6, {FW_BYTES}")
    a("s_mov_b32 s7, 0x20000")
```

```python
from g2common import *

K3_LDS = 160 * 1024
SPIN_MAX = 100000
W_NT = env("W_NT", "")

L_MG = 0
L_AX = 1024
L_PST = 4096
L_BP = 4096
RING = 8192
A0 = 49152
L_Z = RING + 36 * 4096
L_FIN = RING + 65536
CNT_C = FLAGS
CNT_D = FLAGS + 4096
TORD = [0, 4, 1, 5, 2, 6, 3, 7]
KBLK = [0, 1, 6, 7, 8, 2, 3, 4, 5, 0, 1, 6, 7, 8]


def k3(a, ts=False):
    kstart(a, "k3_kernel")
    st = Stamp(a, ts, 2)
    slow = []
    st()
    kargs(a)
    a("s_cmp_ge_u32 s2, 256")
    a("s_cbranch_scc1 L_k3_end")
    a("v_lshrrev_b32 v1, 6, v0")
    a("v_and_b32 v2, 63, v0")
    a("v_readfirstlane_b32 s16, v1")
    a("v_and_b32 v7, 15, v2")
    a("v_lshrrev_b32 v8, 4, v2")
    a("v_lshlrev_b32 v9, 4, v2")
    a("s_and_b32 s17, s2, 7")
    a("s_lshr_b32 s18, s2, 3")
    a("s_and_b32 s19, s18, 3")
    a("s_lshl_b32 s22, s17, 2")
    a("s_add_u32 s22, s22, s19")
    a("s_lshr_b32 s23, s18, 2")
    a("s_lshr_b32 s24, s17, 1")
    a("s_lshl_b32 s24, s24, 2")
    a("s_add_u32 s24, s24, s19")
    a("s_and_b32 s25, s17, 1")
    a("s_mul_i32 s26, s25, 7")
    a("s_min_u32 s27, s23, 6")
    a("s_add_u32 s26, s26, s27")
    a("s_lshl_b32 s26, s26, 2")
    a("s_add_u32 s26, s26, s16")
    a("s_lshl_b32 s27, s22, 16")
    a("s_lshl_b32 s28, s23, 13")
    a("s_add_u32 s27, s27, s28")
    a("s_lshl_b32 s28, s16, 11")
    a("s_add_u32 s27, s27, s28")
    a(f"s_add_u32 s27, s27, {ZWS}")
    a(f"s_add_u32 s28, s28, {L_Z}")
    a("v_lshrrev_b32 v3, 1, v7")
    a("v_lshlrev_b32 v3, 8, v3")
    a("v_and_b32 v4, 1, v7")
    a("v_lshl_add_u32 v3, v4, 4, v3")
    a("s_lshl_b32 s29, s23, 5")
    a(f"s_add_u32 s29, s29, {MOD + 2*1792}")
    a("v_add_u32 v3, s29, v3")
    a("v_and_b32 v13, 1, v8")
    a("v_mul_u32_u24 v4, 3584, v13")
    a("v_add_u32 v3, v3, v4")
    a("s_lshl_b32 s29, s23, 8")
    a(f"s_add_u32 s29, s29, {MOD + 5*1792}")
    a("v_lshl_add_u32 v4, v7, 4, s29")
    a("v_cmp_lt_u32 vcc, 31, v2")
    a("s_min_u32 s29, s16, 2")
    a("s_lshl_b32 s29, s29, 10")
    a("v_cndmask_b32 v3, v3, v4, vcc")
    a(f"s_add_u32 s30, s29, {AUXB - 1024}")
    a("v_add_u32 v4, s30, v9")
    a("s_cmp_eq_u32 s16, 0")
    a("s_cselect_b64 vcc, -1, 0")
    a("v_cndmask_b32 v3, v4, v3, vcc")
    a("v_lshrrev_b32 v12, 1, v8")
    a("s_lshl_b32 s30, s16, 1")
    a("v_add_u32 v12, s30, v12")
    a(f"v_mul_u32_u24 v5, {RT}, v13")
    a("v_lshl_add_u32 v5, v12, 11, v5")
    a("v_lshl_add_u32 v5, v7, 4, v5")
    a(f"s_mul_i32 s68, s22, {4*RT}")
    a("s_lshl_b32 s30, s23, 8")
    a("s_add_u32 s68, s68, s30")
    a(f"s_add_u32 s30, s68, {XT}")
    a(f"s_add_u32 s31, s30, {2*RT}")
    a("s_cmp_eq_u32 s16, 3")
    a("s_cselect_b32 s21, 0, -1")
    a("s_mov_b32 s20, -1")
    XV = 208
    for k in range(8):
        a(f"v_mov_b32 v{XV+k}, 0")
    a("v_lshrrev_b32 v10, 2, v2")
    a("v_mul_u32_u24 v11, 3584, v10")
    a("v_lshrrev_b32 v10, 4, v2")
    a("v_and_b32 v10, 2, v10")
    a("v_and_b32 v4, 3, v2")
    a("v_xor_b32 v10, v10, v4")
    a("v_lshl_add_u32 v10, v10, 4, v11")
    a(f"v_add_u32 v11, {57344 - 1024}, v10")
    a("s_lshl_b32 s69, s26, 6")
    a("s_lshl_b32 s70, s16, 12")
    a(f"s_add_u32 s70, s70, {RING}")
    a("v_and_b32 v32, 7, v7")
    a("v_lshrrev_b32 v33, 3, v7")
    a("s_lshl_b32 s3, s16, 1")
    a("v_add_u32 v33, s3, v33")
    a("v_lshl_add_u32 v34, v33, 6, v32")
    a("s_lshl_b32 s3, s23, 3")
    a("v_add_u32 v34, s3, v34")
    a("v_mul_u32_u24 v34, v34, v8")
    a("v_cvt_f32_u32 v34, v34")
    a(f"v_mul_f32 v34, {fl(1/448)}, v34")
    a("v_cos_f32 v35, v34")
    a("v_sin_f32 v36, v34")
    a("v_cmp_eq_u32 vcc, 0, v8")
    a("v_cmp_gt_u32 s[4:5], 7, v33")
    a("v_cndmask_b32 v37, 2.0, 1.0, vcc")
    a("v_cndmask_b32 v37, 0, v37, s[4:5]")
    a("v_mul_f32 v35, v35, v37")
    a("v_mul_f32 v36, v36, v37")
    a("v_cvt_pk_bf16_f32 v38, v35, -v36")
    a("v_cvt_pk_bf16_f32 v39, v36, v35")
    RB = 96
    rb = lambda z, ri: RB + (z * 2 + ri) * 4
    for k in range(8):
        z, r_ = k >> 2, k & 3
        m = 0x01010101 << k
        p = 4 + 2 * (k & 1)
        a(f"s_mov_b32 s{p}, {hex(m)}")
        a(f"s_mov_b32 s{p+1}, {hex(m)}")
        for ri in range(2):
            a(f"v_cndmask_b32 v{rb(z,ri)+r_}, 0, v{38+ri}, s[{p}:{p+1}]")
    srd(a, 12, P_WS, WS_BYTES)
    a("s_mov_b32 m0, s28")
    srd(a, 56, P_WG, FW_BYTES)
    a("buffer_load_dwordx4 v9, s[12:15], s27 offen lds")
    a("buffer_load_dwordx4 v9, s[12:15], s27 offen offset:1024 lds")
    a("s_mov_b32 m0, s29")
    srd(a, 60, P_WU, FW_BYTES)
    h_misc = a("buffer_load_dwordx4 v3, s[12:15], 0 offen lds")
    a("s_mov_b64 exec, s[20:21]")
    a(f"buffer_load_dwordx4 {vr(XV,4)}, v5, s[12:15], s30 offen")
    a(f"buffer_load_dwordx4 {vr(XV+4,4)}, v5, s[12:15], s31 offen")
    a("s_mov_b64 exec, -1")
    srd(a, 64, P_WD, FW_BYTES)
    srd(a, 8, P_OUT, X_BYTES)

    w1h = {}

    def w1dma(u):
        L = []
        for mu in range(2):
            def f(mu=mu):
                a(f"s_add_u32 m0, s70, {KBLK[u]*16384 + mu*2048}")
                a(f"buffer_load_dwordx4 v10, s[{56+4*mu}:{59+4*mu}], s69 offen {W_NT} lds")

            def g(mu=mu):
                w1h[u] = a(f"buffer_load_dwordx4 v11, s[{56+4*mu}:{59+4*mu}], s69 offen offset:1024 {W_NT} lds")
                if mu:
                    a(f"s_add_u32 s69, s69, {32*3584}")
            L += [f, g]
        return L

    r = Rec()
    M3 = 160
    m3 = lambda it, pi, cs: M3 + ((it * 2 + pi) * 2 + cs) * 4
    r("v_and_b32 v33, 2, v8")
    r("v_lshl_add_u32 v33, v13, 4, v33")
    r("v_cvt_f32_u32 v33, v33")
    for it in range(2):
        r(f"v_add_u32 v34, {16*it}, v7")
        r("v_cvt_f32_u32 v34, v34")
        r(f"v_mul_f32 v34, {fl(1/64)}, v34")
        r("v_mul_f32 v35, v34, v33")
        for pi in range(2):
            for dd in range(4):
                K = pi + 4 * (dd >> 1) + 8 * (dd & 1)
                r(f"v_fmamk_f32 v36, v34, {fl(float(K))}, v35")
                r("v_cos_f32 v37, v36")
                r("v_sin_f32 v38, v36")
                r(f"v_cvt_pk_bf16_f32 v{m3(it,pi,0)+dd}, v37, v37")
                r(f"v_cvt_pk_bf16_f32 v{m3(it,pi,1)+dd}, -v38, v38")
    r("s_mov_b32 s4, 0xaaaa")
    r("s_mov_b32 s5, 0")
    r("v_mov_b32 v36, 0xbf803f80")
    for it in range(2):
        r(f"v_cndmask_b32 v{m3(it,0,0)}, v{m3(it,0,0)}, v36, s[4:5]")
    r("v_lshrrev_b32 v40, 3, v7")
    r("v_lshlrev_b32 v40, 10, v40")
    r("v_lshl_add_u32 v40, v8, 7, v40")
    r("v_lshl_add_u32 v40, v32, 4, v40")
    r(f"v_add_u32 v40, {L_Z}, v40")
    r("v_min_u32 v41, 6, v12")
    r("v_lshlrev_b32 v41, 5, v41")
    r("v_lshlrev_b32 v42, 9, v12")
    r("v_lshl_add_u32 v42, v13, 7, v42")
    r("v_lshl_add_u32 v42, v7, 3, v42")
    r(f"s_add_u32 s27, s68, {X1C}")
    r(f"s_add_u32 s28, s27, {2*RT}")
    r(f"s_add_u32 s29, s68, {X1}")
    r(f"s_add_u32 s30, s29, {2*RT}")
    r("s_mov_b32 s31, 0x3f803f80")
    weave(a, r.l, w1dma(0) + w1dma(1) + w1dma(2))
    st()
    a.wait_vm(h_misc)
    a("s_barrier")
    ZD = 64
    zd = lambda z, nu: ZD + (z * 4 + nu) * 4
    for nu in range(4):
        for z in range(2):
            a(f"ds_read_b128 {vr(zd(z,nu),4)}, v40 offset:{z*4096+(nu>>1)*512+(nu&1)*2048}")
    GA_, CB_ = 216, 224
    for k in range(2):
        a(f"ds_read_b128 {vr(GA_+4*k,4)}, v41 offset:{L_MG+16*k}")
        a(f"ds_read_b128 {vr(CB_+4*k,4)}, v41 offset:{L_MG+256+16*k}")
    r = Rec()
    G = 112
    for nu in range(4):
        for z in range(2):
            for ri in range(2):
                d = vr(G + (nu * 2 + ri) * 4, 4)
                r(f"{MFMA} {d}, {vr(zd(z,nu),4)}, {vr(rb(z,ri),4)}, {d if z else 0}")
    XU = 232
    for k in range(8):
        r(f"v_lshlrev_b32 v{XU+2*k}, 16, v{XV+k}")
        r(f"v_and_b32 v{XU+2*k+1}, 0xffff0000, v{XV+k}")
    GA = 144
    EO = 192
    for pi in range(2):
        for ri in range(2):
            for dd in range(4):
                s_ = G + ((2 * pi + (dd >> 1)) * 2 + ri) * 4 + 2 * (dd & 1)
                r(f"v_cvt_pk_bf16_f32 v{GA+(pi*2+ri)*4+dd}, v{s_}, v{s_+1}")
    for pi in range(2):
        for ri in range(2):
            for it in range(2):
                d = vr(EO + (it * 2 + pi) * 4, 4)
                r(f"{MFMA} {d}, {vr(GA+(pi*2+ri)*4,4)}, {vr(m3(it,pi,ri),4)}, {d if ri else 0}")
    O1, O2, SS = 80, 88, 96
    for k in range(4):
        r(f"v_mov_b32 v{SS+k}, 0")
    Y = 64
    for it in range(2):
        for r_ in range(4):
            e_, o_ = EO + it * 8 + r_, EO + it * 8 + 4 + r_
            r(f"v_add_f32 v{Y+it*4+r_}, v{e_}, v{o_}")
            r(f"v_sub_f32 v{Y+8+it*4+r_}, v{e_}, v{o_}")
    for P in range(2):
        for r_ in range(4):
            r(f"v_permlane16_swap_b32 v{Y+P*8+r_}, v{Y+P*8+4+r_}")
    for P in range(2):
        for e in range(8):
            r(f"v_fma_f32 v{Y+P*8+e}, v{Y+P*8+e}, v{GA_+e}, v{XU+P*8+e}")
        for k in range(4):
            r(f"v_cvt_pk_bf16_f32 v{O1+P*4+k}, v{Y+P*8+2*k}, v{Y+P*8+2*k+1}")
    for k in range(4):
        for P in range(2):
            r(f"v_dot2c_f32_bf16 v{SS+2*P}, s31, v{O1+P*4+k}")
            r(f"v_dot2c_f32_bf16 v{SS+2*P+1}, v{O1+P*4+k}, v{O1+P*4+k}")
    n_pre = len(r.l)
    for P in range(2):
        for e in range(8):
            r(f"v_mul_f32 v{Y+P*8+e}, v{Y+P*8+e}, v{CB_+e}")
            if P == 0 and e == 3:
                for P2 in range(2):
                    r(f"ds_write_b64 v42, {vr(SS+2*P2,2)} offset:{L_PST+P2*256}")
        for k in range(4):
            r(f"v_cvt_pk_bf16_f32 v{O2+P*4+k}, v{Y+P*8+2*k}, v{Y+P*8+2*k+1}")
    weave(a, r.l, w1dma(3) + w1dma(4) + w1dma(5) + w1dma(6), end=n_pre)
    a("s_mov_b64 exec, s[20:21]")
    a(f"buffer_store_dwordx4 {vr(O2,4)}, v5, s[12:15], s27 offen sc1")
    a(f"buffer_store_dwordx4 {vr(O2+4,4)}, v5, s[12:15], s28 offen sc1")
    a(f"buffer_store_dwordx4 {vr(O1,4)}, v5, s[12:15], s29 offen sc1")
    h_st = a(f"buffer_store_dwordx4 {vr(O1+4,4)}, v5, s[12:15], s30 offen sc1")
    a("s_mov_b64 exec, -1")
    a("s_waitcnt lgkmcnt(0)")
    a("s_barrier")
    st()
    a("s_cmp_lg_u32 s16, 0")
    a("s_cbranch_scc1 L_k3_nostat")
    a("v_lshlrev_b32 v43, 3, v2")
    for k in range(8):
        a(f"ds_read_b64 {vr(112+2*k,2)}, v43 offset:{L_PST+k*512}")
    a("v_lshlrev_b32 v43, 10, v8")
    a("v_lshl_add_u32 v43, v7, 3, v43")
    a("s_lshl_b32 s4, s22, 12")
    a("s_lshl_b32 s5, s23, 7")
    a("s_add_u32 s4, s4, s5")
    a(f"s_add_u32 s4, s4, {STATS}")
    for st_ in (8, 4, 2):
        for k in range(st_):
            a(f"v_add_f32 v{112+k}, v{112+k}, v{112+k+st_}")
    a.raw("    buffer_store_dwordx2 v[112:113], v43, s[12:15], s4 offen sc1")
    a.label("L_k3_nostat")
    a.hist = []
    for it_ in w1dma(7) + w1dma(8):
        run(a, it_)
    VT = 12
    a("v_mov_b32 v44, v12")
    a("v_mov_b32 v45, v13")
    a("v_bfe_u32 v32, v2, 2, 2")
    a("v_and_b32 v33, 3, v2")
    a("v_lshl_add_u32 v34, v8, 3, v32")
    a("v_lshlrev_b32 v34, 6, v34")
    a("v_lshl_add_u32 v34, v33, 3, v34")
    a("v_add_u32 v34, s70, v34")
    a(f"v_lshl_add_u32 v{VT}, v45, 5, v34")
    a(f"v_xor_b32 v{VT+1}, 32, v{VT}")
    for k in (1, 2):
        a(f"v_add_u32 v{VT+2*k}, {65536*k}, v{VT}")
        a(f"v_add_u32 v{VT+2*k+1}, {65536*k}, v{VT+1}")
    a("v_min_u32 v46, 1, v7")
    a("v_lshlrev_b32 v46, 10, v46")
    a("v_lshl_add_u32 v46, v8, 4, v46")
    AUXACC = 48
    AXF = 80

    def w1reg(ks, t):
        return (ks * 4 + t) * 4

    def w1use(u):
        a.wait_vm(w1h[u])
        kb = KBLK[u]
        base, off = VT + 2 * (kb // 4), (kb % 4) * 16384
        ax = AXF + 4 * (u % 4)
        a(f"ds_read_b128 {vr(ax,4)}, v46 offset:{L_AX + u*64}")
        for t in range(4):
            mu, tau = t >> 1, t & 1
            for rho in range(2):
                a(f"ds_read_b64_tr_b16 {vr(w1reg(u,t)+2*rho,2,'a')}, v{base+tau} offset:{off+mu*2048+rho*256}")

    def w1aux(u):
        ax = AXF + 4 * (u % 4)
        for t in range(4):
            d = vr(AUXACC + t * 4, 4)
            a(f"{MFMA} {d}, {vr(ax,4)}, {vr(w1reg(u,t),4,'a')}, {d if u else 0}")

    def consume(u):
        w1use(u)
        if u > 0:
            w1aux(u - 1)
            if u - 1 <= 4:
                for it_ in w1dma(u - 1 + 9):
                    run(a, it_)
    VAT, VPL, VONE = 29, 30, 31
    for u in range(0, 3):
        consume(u)
    a("s_lshr_b32 s4, s22, 1")
    a("s_lshl_b32 s4, s4, 7")
    a(f"v_mov_b32 v{VAT}, s4")
    a(f"v_mov_b32 v{VONE}, 1")
    a.wait_vm(h_st)
    a("s_barrier")
    st()
    a("s_cmp_lg_u32 s16, 0")
    a("s_cbranch_scc1 L_k3_nosigc")
    a("s_mov_b64 exec, 1")
    a.raw(f"    buffer_atomic_add v{VONE}, v{VAT}, s[12:15], 0 offen offset:{CNT_C} sc1")
    a("s_mov_b64 exec, -1")
    a.label("L_k3_nosigc")
    a("s_cmp_ge_u32 s18, 28")
    a("s_cbranch_scc1 L_k3_early")
    for u in range(3, 9):
        consume(u)
    a("s_lshl_b32 s4, s24, 7")
    a(f"v_mov_b32 v{VPL}, s4")
    a("s_waitcnt lgkmcnt(0)")
    a("s_barrier")

    def poll_issue(reg, off):
        return a(f"buffer_load_dwordx4 {vr(reg,4)}, v{VPL}, s[12:15], 0 offen offset:{off} sc1")

    def poll_check(tag, reg, stage, off, target):
        a(f"v_readfirstlane_b32 s77, v{reg+stage}")
        a(f"s_cmp_lt_u32 s77, {target}")
        a(f"s_cbranch_scc1 L_slow_{tag}")
        a.label(f"L_back_{tag}")
        slow.append(f"""L_slow_{tag}:
    s_mov_b32 s76, 0
L_spin_{tag}:
    buffer_load_dwordx4 {vr(reg,4)}, v{VPL}, s[12:15], 0 offen offset:{off} sc1
    s_add_u32 s76, s76, 1
    s_waitcnt vmcnt(0)
    v_readfirstlane_b32 s77, v{reg+stage}
    s_cmp_gt_u32 s76, {SPIN_MAX}
    s_cbranch_scc1 L_back_{tag}
    s_cmp_lt_u32 s77, {target}
    s_cbranch_scc1 L_spin_{tag}
    s_branch L_back_{tag}""")
    PL = 4
    PL = 100
    poll_issue(PL, CNT_C)
    VD, VTD, VB0, VB1, VBP = 18, 22, 26, 27, 28
    a("v_lshrrev_b32 v34, 3, v2")
    a("v_mul_u32_u24 v35, 896, v34")
    a("v_and_b32 v34, 6, v34")
    a("v_and_b32 v36, 7, v2")
    a("v_xor_b32 v34, v34, v36")
    a(f"v_lshl_add_u32 v{VD}, v34, 4, v35")
    for j in range(1, 4):
        a(f"v_add_u32 v{VD+j}, {j*6144}, v{VD}")
    a("v_lshl_add_u32 v34, v8, 2, v32")
    a("v_lshlrev_b32 v35, 7, v34")
    a("v_lshl_add_u32 v35, v33, 3, v35")
    a("v_add_u32 v35, s70, v35")
    a("v_bfe_u32 v34, v34, 1, 2")
    a(f"v_lshl_add_u32 v{VTD}, v34, 5, v35")
    for t in range(1, 4):
        a(f"v_xor_b32 v{VTD+t}, {32*t}, v{VTD}")
    a(f"v_add_u32 v{VB0}, {A0}, v9")
    a(f"v_add_u32 v{VB1}, {A0 + 4*RT}, v9")
    a(f"v_lshlrev_b32 v{VBP}, 4, v7")
    a("s_mul_i32 s4, s26, 37")
    a("s_lshr_b32 s4, s4, 9")
    a("s_lshl_b32 s5, s24, 2")
    a("s_add_u32 s4, s4, s5")
    a("s_lshl_b32 s4, s4, 7")
    a(f"s_add_u32 s4, s4, {CNT_D}")
    a(f"v_mov_b32 v{VAT}, s4")
    a("v_cmp_ne_u32 vcc, 0, v2")
    a("v_mov_b32 v34, 0x7fffff00")
    a(f"v_cndmask_b32 v{VAT}, v{VAT}, v34, vcc")
    a(f"s_mul_i32 s27, s24, {8*RT}")
    a("s_lshr_b32 s4, s16, 1")
    a(f"s_mul_i32 s4, s4, {4*RT}")
    a("s_add_u32 s27, s27, s4")
    a("s_and_b32 s4, s16, 1")
    a("s_mul_i32 s4, s4, 7168")
    a("s_add_u32 s27, s27, s4")
    a(f"s_add_u32 s27, s27, {X1C}")
    a("s_mul_i32 s28, s16, 7168")
    a(f"s_add_u32 s28, s28, {A0}")
    a("v_lshrrev_b32 v34, 1, v8")
    a("v_lshlrev_b32 v34, 12, v34")
    a("v_lshl_add_u32 v34, v45, 9, v34")
    a("v_lshl_add_u32 v34, v7, 3, v34")
    a("s_lshl_b32 s29, s24, 3")
    a("s_add_u32 s29, s29, s16")
    a("s_lshl_b32 s29, s29, 10")
    a(f"s_add_u32 s29, s29, {STATS}")
    a(f"v_lshl_add_u32 v47, v44, 8, v{VBP}")
    a(f"s_mul_i32 s71, s16, {14*32*896}")
    a("s_lshl_b32 s4, s23, 7")
    a("s_add_u32 s71, s71, s4")
    a("s_mul_i32 s72, s24, 448")
    a("s_add_u32 s72, s72, s26")
    a("s_lshl_b32 s72, s72, 10")
    a(f"s_add_u32 s72, s72, {HWS}")
    for u in (9, 10, 11):
        consume(u)
    poll_check("c", PL, 0, CNT_C, 16)
    st()
    a1h = {}

    def a1dma(p):
        L = []
        for k in range(7):
            def f(k=k):
                if k in (0, 4):
                    a(f"s_add_u32 s4, s27, {p*RT + k*1024}")
                    a(f"s_add_u32 s5, s28, {p*2*RT + k*1024}")
                a("s_mov_b32 m0, s5")
                a1h[p] = a(f"buffer_load_dwordx4 v9, s[12:15], s4 offen offset:{(k%4)*1024} sc1 lds")
            L.append(f)
        return L
    for f in a1dma(0):
        f()
    SV = 240
    for k in range(4):
        a(f"buffer_load_dwordx2 {vr(SV+2*k,2)}, v34, s[12:15], s29 offen offset:{k*128} sc1")
    for u in (12, 13):
        consume(u)
    w1aux(13)
    a("s_lshr_b32 s4, s22, 1")
    a("s_lshl_b32 s4, s4, 2")
    a("s_add_u32 s4, s4, s16")
    a("s_lshl_b32 s4, s4, 7")
    a(f"s_add_u32 s4, s4, {CNT_D}")
    a(f"v_mov_b32 v{VPL}, s4")

    ACC = (32, 48)
    AP, BF, NB, TMP, HO = 64, 80, 4, 96, 104
    PL = 10

    def wdreg(u, t):
        i = u * 4 + t
        if i < 36:
            return "v", 112 + 4 * i
        if i < 44:
            return "a", 224 + 4 * (i - 36)
        return "a", 4 * (i - 44)
    wdh = {}

    def wddma(u, blk):
        L = []
        for j in range(4):
            def f(j=j):
                a(f"s_add_u32 m0, s70, {blk*16384}")
                wdh[u] = a(f"buffer_load_dwordx4 v{VD+j}, s[64:67], s71 offen offset:{j*1024} {W_NT} lds")
                if j == 3:
                    a(f"s_add_u32 s71, s71, {32*896}")
            L.append(f)
        return L

    wdrd = {}

    def wdread(u, blk):
        L = [lambda: a.wait_vm(wdh[u])]
        for t in range(4):
            f_, r0 = wdreg(u, t)
            for rho in range(2):
                def f(t=t, rho=rho, f_=f_, r0=r0):
                    wdrd[u] = a(f"ds_read_b64_tr_b16 {vr(r0+2*rho,2,f_)}, v{VTD+t} offset:{blk*16384+rho*2048}")
                L.append(f)
        return L

    def aprime():
        L = ["s_mov_b32 s4, 0xffff", "s_mov_b32 s5, 0"]
        for t in range(4):
            c_, b_, d = AUXACC + t * 4, AUXACC + t * 4 + 1, AP + t * 4
            L += [f"v_cndmask_b32 v{c_}, 0, v{c_}, s[4:5]",
                  f"v_cndmask_b32 v{b_}, 0, v{b_}, s[4:5]",
                  f"v_cvt_pk_bf16_f32 v{d+1}, v{c_}, v{b_}",
                  f"v_lshlrev_b32 v{TMP}, 16, v{d+1}",
                  f"v_and_b32 v{TMP+1}, 0xffff0000, v{d+1}",
                  f"v_sub_f32 v{TMP}, v{c_}, v{TMP}",
                  f"v_sub_f32 v{TMP+1}, v{b_}, v{TMP+1}",
                  f"v_cvt_pk_bf16_f32 v{d}, v{c_}, v{TMP}",
                  f"v_cvt_pk_bf16_f32 v{d+2}, v{TMP+1}, v{b_}",
                  f"v_mov_b32 v{d+3}, 0"]
        return L
    for ins in aprime():
        a(ins)

    def stats_code():
        s = SV
        return [f"v_add_f32 v{s}, v{s}, v{s+2}", f"v_add_f32 v{s+1}, v{s+1}, v{s+3}",
                f"v_add_f32 v{s+4}, v{s+4}, v{s+6}", f"v_add_f32 v{s+5}, v{s+5}, v{s+7}",
                f"v_add_f32 v{s}, v{s}, v{s+4}", f"v_add_f32 v{s+1}, v{s+1}, v{s+5}",
                f"v_mov_b32 v{s+2}, v{s}", f"v_mov_b32 v{s+3}, v{s+1}",
                f"v_permlane16_swap_b32 v{s}, v{s+2}", f"v_permlane16_swap_b32 v{s+1}, v{s+3}",
                f"v_add_f32 v{s}, v{s}, v{s+2}", f"v_add_f32 v{s+1}, v{s+1}, v{s+3}",
                f"v_mul_f32 v{s}, {fl(-1/448)}, v{s}", f"v_mul_f32 v{s+1}, {fl(1/448)}, v{s+1}",
                f"v_fma_f32 v{s+1}, -v{s}, v{s}, v{s+1}", f"v_max_f32 v{s+1}, 0, v{s+1}",
                f"v_add_f32 v{s+1}, {fl(1e-5)}, v{s+1}", f"v_sqrt_f32 v{s+1}, v{s+1}",
                f"v_cvt_pk_bf16_f32 v{s+4}, v{s}, v{s}",
                f"v_cvt_pk_bf16_f32 v{s+2}, v{s}, v{s+1}",
                f"v_lshlrev_b32 v{s+3}, 16, v{s+2}", f"v_and_b32 v{s+2}, 0xffff0000, v{s+2}",
                f"v_sub_f32 v{s+3}, v{s}, v{s+3}", f"v_sub_f32 v{s+2}, v{s+1}, v{s+2}",
                f"v_cvt_pk_bf16_f32 v{s+5}, v{s+3}, v{s+1}", f"v_cvt_pk_bf16_f32 v{s+6}, v{s+1}, v{s+2}",
                f"v_mov_b32 v{s+7}, 0",
                f"ds_write_b128 v{s+8}, {vr(s+4,4)} offset:{L_BP}",
                "s_waitcnt lgkmcnt(0)", "s_barrier"]
    a(f"v_mov_b32 v{SV+8}, v47")

    hst = {}

    def epilogue(i):
        ac = ACC[i & 1]
        ho = HO + 4 * (i & 1)
        L = []
        for tau in range(2):
            for r_ in range(4):
                k = tau * 4 + r_
                L.append(f"v_max_f32 v{TMP+k}, 0, v{ac+k}")
            for r_ in range(4):
                k = tau * 4 + r_
                L.append(f"v_mul_f32 v{TMP+k}, v{TMP+k}, v{ac+8+k}")
            for p in range(2):
                L.append(f"v_cvt_pk_bf16_f32 v{ho+tau*2+p}, v{TMP+tau*4+2*p}, v{TMP+tau*4+2*p+1}")

        def f():
            a(f"s_add_u32 s73, s72, {TORD[i]*57344}")
            hst[i] = a(f"buffer_store_dwordx4 {vr(ho,4)}, v9, s[12:15], s73 offen sc1")
        L.append(f)
        return L

    def publish(i, stage):
        def f():
            a.wait_vm(hst[i])
            a(f"buffer_atomic_add v{VONE}, v{VAT}, s[12:15], 0 offen offset:{stage*4} sc1")
        return f

    seq = [(i, ks) for i in range(8) for ks in range(15)]
    rd_i = 0

    def issue_read():
        nonlocal rd_i
        if rd_i >= len(seq):
            return
        i, ks = seq[rd_i]
        if ks == 0 and i % 2 == 0:
            a.wait_vm(a1h[i // 2])
            a("s_barrier")
        dst = vr(BF + 4 * (rd_i % NB), 4)
        if ks < 14:
            a(f"ds_read_b128 {dst}, v{VB0 if i < 4 else VB1} offset:{(i % 4)*RT + ks*1024}")
        else:
            a(f"ds_read_b128 {dst}, v{VBP} offset:{L_BP + i*256}")
        rd_i += 1

    A2_0, A2_N = 48, 44
    a2reg = lambda i: vr(A2_0 + 4 * (i % A2_N), 4, "a")
    a("s_mul_i32 s74, s22, 224")
    a("s_mul_i32 s4, s16, 14")
    a("s_add_u32 s74, s74, s4")
    a("s_lshl_b32 s74, s74, 10")
    a(f"s_add_u32 s74, s74, {HWS}")
    a2n = 0

    def a2load():
        nonlocal a2n
        i = a2n
        if i >= 56:
            return
        if i == 28:
            poll_check("b", PL, 1, 0, 14)
        if i == 42:
            poll_check("cc", PL, 2, 0, 14)
        rho, k = divmod(i, 14)
        if k % 4 == 0:
            a(f"s_add_u32 s75, s74, {rho*57344 + k*1024}")
        a(f"buffer_load_dwordx4 {a2reg(i)}, v9, s[12:15], s75 offen offset:{(k%4)*1024} sc1")
        a2n += 1

    side = {h: [] for h in range(16)}
    side[0] += a1dma(1)
    side[4] += a1dma(2)
    side[8] += a1dma(3)
    DM = {0: (1, 0), 1: (2, 1), 2: (3, 0), 3: (4, 1), 4: (5, 2), 5: (6, 3), 6: (6, 0), 7: (7, 1), 8: (8, 2), 9: (9, 3),
          10: (10, 0), 11: (11, 1), 12: (12, 2), 13: (13, 3)}
    RD = {u: u + 3 for u in range(11)}
    prev_in_blk = {}
    for h in range(16):
        for u in range(11):
            if RD[u] == h:
                side[h] += wdread(u, DM[u][1])
        for u in range(14):
            if DM[u][0] == h:
                blk = DM[u][1]
                if blk in prev_in_blk:
                    pu = prev_in_blk[blk]
                    assert RD[pu] <= h
                    side[h].append(lambda pu=pu: a.wait_lg(wdrd[pu]))
                side[h] += wddma(u, blk)
                prev_in_blk[blk] = u
    side[9].append(publish(3, 0))
    side[13].append(publish(5, 1))
    side[13].append(lambda: poll_issue(PL, 0))

    def findma():
        a("s_lshl_b32 s4, s22, 2")
        a("s_add_u32 s4, s4, s16")
        a("s_lshl_b32 s5, s4, 10")
        a(f"s_add_u32 s5, s5, {STATS - 2048}")
        a(f"s_mul_i32 s4, s4, {RT}")
        a("s_lshl_b32 s6, s23, 11")
        a("s_add_u32 s4, s4, s6")
        a(f"s_add_u32 s4, s4, {X1}")
        a("s_add_u32 m0, s70, 65536")
        a("buffer_load_dwordx4 v9, s[12:15], s4 offen sc1 lds")
        a("buffer_load_dwordx4 v9, s[12:15], s4 offen offset:1024 sc1 lds")
        return a("buffer_load_dwordx4 v9, s[12:15], s5 offen offset:2048 sc1 lds")

    PF = 3
    for _ in range(PF):
        issue_read()
    st()
    for i in range(8):
        st('g')
        ac = ACC[i & 1]
        for hf in range(2):
            main = []
            for ks in (range(0, 8) if hf == 0 else range(8, 15)):
                sl = BF + 4 * ((i * 15 + ks) % NB)
                for t in range(4):
                    d = vr(ac + t * 4, 4)
                    A = vr(w1reg(ks, t), 4, 'a') if ks < 14 else vr(AP + t * 4, 4)
                    main.append(f"{MFMA} {d}, {A}, {vr(sl,4)}, {d if ks else 0}")
                    if t == 0:
                        main.append(issue_read)
                if i == 7:
                    if ks == 2:
                        main.append(lambda: poll_check("a", PL, 0, 0, 14))
                    if 3 <= ks <= 5:
                        u = 8 + ks
                        main += wdread(u, DM[u][1])
                    if ks >= 3:
                        main.append(a2load)
            fill = []
            if hf == 0:
                if i > 0:
                    fill += epilogue(i - 1)
                else:
                    fill += stats_code()
            sd = side[2 * i + hf]
            merged, ia, ib = [], 0, 0
            tot = len(fill) + len(sd)
            for k in range(tot):
                if ib * len(fill) <= ia * len(sd) and ib < len(sd) or ia >= len(fill):
                    merged.append(sd[ib]); ib += 1
                else:
                    merged.append(fill[ia]); ia += 1
            weave(a, main, merged, start=(7 if hf == 0 else 0))
    st('g')
    h_fin = findma()
    a2load()
    for ins in epilogue(7):
        run(a, ins)
    poll_issue(PL, 0)
    st()
    st('g')
    AC2 = [64, 80, 32, 48]
    pre = ["v_lshrrev_b32 v16, 1, v8", "v_lshl_add_u32 v16, v16, 2, v7", "v_and_b32 v14, 15, v16",
           "v_xor_b32 v15, 8, v14", "v_lshlrev_b32 v16, 8, v8", "v_add_u32 v16, s70, v16",
           "v_lshl_add_u32 v14, v14, 4, v16", "v_lshl_add_u32 v15, v15, 4, v16",
           "v_lshrrev_b32 v18, 2, v2", "v_and_b32 v19, 3, v2",
           "v_lshl_add_u32 v16, v19, 2, v18", "v_and_b32 v16, 15, v16", "v_lshlrev_b32 v16, 4, v16",
           "v_lshl_add_u32 v16, v19, 9, v16", "s_lshl_b32 s4, s16, 14", f"s_add_u32 s4, s4, {RING}",
           "v_add_u32 v16, s4, v16",
           "v_lshlrev_b32 v17, 8, v19", "s_add_u32 s4, s70, 65536", "v_add_u32 v17, s4, v17",
           "v_lshl_add_u32 v20, v18, 3, v17",
           "v_lshl_add_u32 v17, v18, 4, v17",
           "v_lshlrev_b32 v21, 5, v19",
           "v_mul_u32_u24 v22, 28672, v18", "v_lshl_add_u32 v22, v19, 4, v22",
           "s_lshl_b32 s6, s16, 9", "s_add_u32 s6, s6, s22", "s_mul_i32 s6, s6, 896",
           "s_lshl_b32 s7, s23, 7", "s_add_u32 s6, s6, s7"]
    GB_, XU2, XR_, S2 = 64, 80, 96, 104
    fin = [lambda: a.wait_vm(h_fin),
           f"ds_read_b64 {vr(S2,2)}, v20 offset:2048", f"ds_read_b64 {vr(S2+2,2)}, v20 offset:{2048+128}"]
    for hi in range(2):
        fin.append(f"ds_read_b128 {vr(XR_+4*hi,4)}, v17 offset:{hi*1024}")
    for hi in range(2):
        for k in range(2):
            fin.append(f"ds_read_b128 {vr(GB_+hi*8+4*k,4)}, v21 offset:{L_MG+512+hi*128+k*16}")
    fin += [f"v_add_f32 v{S2}, v{S2}, v{S2+2}", f"v_add_f32 v{S2+1}, v{S2+1}, v{S2+3}"]
    for m in ("quad_perm:[1,0,3,2]", "quad_perm:[2,3,0,1]"):
        fin += [f"v_add_f32_dpp v{S2+k}, v{S2+k}, v{S2+k} {m} {DPPM}" for k in range(2)]
    fin += [f"v_mul_f32 v{S2}, {fl(1/448)}, v{S2}", f"v_mul_f32 v{S2+1}, {fl(1/448)}, v{S2+1}",
            f"v_fma_f32 v{S2+1}, -v{S2}, v{S2}, v{S2+1}", f"v_max_f32 v{S2+1}, 0, v{S2+1}",
            f"v_add_f32 v{S2+1}, {fl(1e-5)}, v{S2+1}", f"v_rcp_f32 v{S2+1}, v{S2+1}"]
    for k in range(8):
        fin += [f"v_lshlrev_b32 v{XU2+2*k}, 16, v{XR_+k}", f"v_and_b32 v{XU2+2*k+1}, 0xffff0000, v{XR_+k}"]
    fin += [f"v_mul_f32 v{GB_+e}, v{GB_+e}, v{S2+1}" for e in range(16)]
    pw = lambda rho: [f"ds_write_b128 v{14+(t&1)}, {vr(AC2[rho]+4*t,4)} offset:{rho*16384+t*1024}" for t in range(4)]
    for rho in range(4):
        main = []
        for k in range(14):
            i = rho * 14 + k
            for t in range(4):
                d = vr(AC2[rho] + 4 * t, 4)
                f_, r0 = wdreg(k, t)
                main.append(f"{MFMA} {d}, {vr(r0,4,f_)}, {a2reg(i)}, {d if k else 0}")
                if t == 1:
                    main.append(a2load)
            if rho == 0 and k == 5:
                main.append(publish(7, 2))
            if rho == 1 and k == 8:
                main.append(lambda: poll_issue(PL, 0))
        fill = []
        if rho == 0:
            fill = pre
        else:
            fill = pw(rho - 1)
            if rho == 3:
                fill = fill + fin
        weave(a, main, fill, start=8)
        st('h')
    for p in pw(3):
        a(p)
    a("s_waitcnt lgkmcnt(0)")
    a("s_barrier")
    st()
    st('h')
    PR = 112
    for hi in range(2):
        for go in range(2):
            for sw in range(4):
                a(f"ds_read_b128 {vr(PR+((hi*2+go)*4+sw)*4,4)}, v16 offset:{sw*4096+hi*2048+go*256}")
    OO = 32
    for hi in range(2):
        for go in range(2):
            b_ = PR + (hi * 2 + go) * 16
            for r_ in range(4):
                a(f"v_add_f32 v{b_+r_}, v{b_+r_}, v{b_+4+r_}")
                a(f"v_add_f32 v{b_+8+r_}, v{b_+8+r_}, v{b_+12+r_}")
            for r_ in range(4):
                e = hi * 8 + go * 4 + r_
                a(f"v_add_f32 v{b_+r_}, v{b_+r_}, v{b_+8+r_}")
                a(f"v_fma_f32 v{b_+r_}, v{b_+r_}, v{GB_+e}, v{XU2+e}")
            a(f"v_cvt_pk_bf16_f32 v{OO+hi*4+go*2}, v{b_}, v{b_+1}")
            a(f"v_cvt_pk_bf16_f32 v{OO+hi*4+go*2+1}, v{b_+2}, v{b_+3}")
        a(f"buffer_store_dwordx4 {vr(OO+hi*4,4)}, v22, s[8:11], s6 offen offset:{hi*64}")
    st()
    st('h')
    a.label("L_k3_fin")
    st.flush(16, 12, "k3")
    a.label("L_k3_end")
    a("s_endpgm")
    a.raw("L_k3_early:\n    s_waitcnt vmcnt(0) lgkmcnt(0)\n    s_branch L_k3_fin")
    for s_ in slow:
        a.raw(s_)
    return kdesc("k3_kernel", 256, 256, 102)
```

```python
from g2common import *

def k4(a, spec, nk):
    kstart(a, "k4_kernel")
    kargs(a)
    a("s_cmp_ge_u32 s2, 1")
    a("s_cbranch_scc1 L_k4_end")
    srd(a, 12, P_WS, WS_BYTES)
    a(f"s_sub_u32 s8, s52, {512*nk}")
    a("s_subb_u32 s9, s53, 0")
    a("s_and_b32 s9, s9, 0xffff")
    a("s_mov_b32 s10, 256")
    a("s_mov_b32 s11, 0x20000")
    a("v_mov_b32 v3, 0")
    for o, (k, lo, n, si, kind) in enumerate(spec):
        a(f"v_min_u32 v1, {n-1}, v0")
        a("v_lshlrev_b32 v1, 6, v1")
        a(f"s_mov_b32 s4, {TS + k*0x8000 + lo*64 + si*4}")
        a("buffer_load_dword v2, v1, s[12:15], s4 offen")
        if kind == "min":
            a("v_not_b32 v2, v2")
        a(f"buffer_atomic_umax v2, v3, s[8:11], 0 offen offset:{o*4}")
        a("s_waitcnt vmcnt(0)")
    a.label("L_k4_end")
    a("s_endpgm")
    return kdesc("k4_kernel", 8, 0, 102)
```

```python
import sys
from g2common import *
from g2k1 import k1, K1_GRID, K1_LDS
from g2k2 import k2, K2_LDS
from g2k3 import k3, K3_LDS
from g2k4 import k4
SPEC = [(0,0,224,0,"min"),(0,0,224,1,"max"),(0,0,224,2,"max"),(0,224,80,1,"max"),(0,320,128,2,"max"),(1,0,256,0,"min"),(1,0,256,2,"max"),(1,0,256,3,"max"),(2,0,224,0,"min"),(2,0,224,1,"max"),(2,0,224,3,"max"),(2,0,224,4,"max"),(2,0,224,5,"max"),(2,0,224,6,"max"),(2,0,224,7,"max"),(2,0,224,8,"max")]

def build(kernels, ts=False):
    a = Asm()
    hdr = open("adaLN_cond__spectral_gfnet__glu_gated_reglu__prompt.s.ref").read().split("; Override")[0]
    launches = {"k1": f"; @launch kernel=k1_kernel grid=({K1_GRID},1,1) block=(256,1,1) lds={K1_LDS}",
                "k2": f"; @launch kernel=k2_kernel grid=(256,1,1) block=(256,1,1) lds={K2_LDS}",
                "k3": f"; @launch kernel=k3_kernel grid=(256,1,1) block=(256,1,1) lds={K3_LDS}",
                "k4": "; @launch kernel=k4_kernel grid=(1,1,1) block=(256,1,1) lds=0"}
    a.raw(hdr.rstrip())
    for k in kernels:
        a.raw(launches[k])
    a.raw('.amdgcn_target "amdgcn-amd-amdhsa--gfx950"\n.text')
    descs = [{"k1": k1, "k2": k2, "k3": k3, "k4": lambda a, ts: k4(a, SPEC, 0)}[k](a, ts) for k in kernels]
    a.raw('.section .rodata,"a"')
    for d in descs:
        a.raw(d)
    return a.text()

if __name__ == "__main__":
    out = sys.argv[1]
    ks = sys.argv[2].split(",") if len(sys.argv) > 2 else ["k1", "k2", "k3"]
    ts = len(sys.argv) > 3 and sys.argv[3] == "ts"
    open(out, "w").write(build(ks, ts))
```

```python
import sys
src, out, k, lo, hi = sys.argv[1], sys.argv[2], int(sys.argv[3]), int(sys.argv[4]), int(sys.argv[5])
t = open(src).read()
t = t.replace("s_memrealtime s[100:101]", "s_memrealtime s[98:99]")
t = t.replace("    s_memrealtime s[78:79]\n", "    s_memrealtime s[78:79]\n    s_mov_b64 s[100:101], s[0:1]\n", 1)
t = t.replace("v_mov_b32 v11, s100", "v_mov_b32 v11, 0")
vals = ["~78", "78"] + [str(78 + 2 * i) for i in range(1, 11)] + ["~84", "~90", "~98", "31"]
c = ["s_cmp_ge_u32 s2, 224", "s_cbranch_scc1 L_nodbg", "s_load_dwordx2 s[4:5], s[100:101], 80", "s_mov_b32 s6, 256", "s_mov_b32 s7, 0x20000"]
for i, v in enumerate(vals):
    if v[0] == "~":
        c += [f"s_not_b32 s3, s{v[1:]}", f"v_writelane_b32 v20, s3, {i}"]
    else:
        c += [f"v_writelane_b32 v20, s{v}, {i}"]
c += ["s_mov_b64 exec, 0xffff", "v_mbcnt_lo_u32_b32 v21, -1, 0", "v_lshlrev_b32 v21, 2, v21", "s_waitcnt lgkmcnt(0)", "s_and_b32 s5, s5, 0xffff",
      "s_nop 4", "buffer_atomic_umax v20, v21, s[4:7], 0 offen sc1", "L_nodbg:"]
if k >= 0:
    c += [f"s_cmp_lt_u32 s2, {lo}", "s_cbranch_scc1 L_end", f"s_cmp_ge_u32 s2, {hi}", "s_cbranch_scc1 L_end",
          "L_hold:", "s_sleep 2", "s_memrealtime s[0:1]", "s_waitcnt lgkmcnt(0)", f"s_sub_u32 s0, s0, s{78+2*k}", "s_cmp_lt_u32 s0, 5000", "s_cbranch_scc1 L_hold"]
body = "\n".join(x if x.endswith(":") else "    " + x for x in c)
assert t.count("\nL_end:\n") == 1
t = t.replace("\nL_end:\n", "\n" + body + "\nL_end:\n")
open(out, "w").write(t)
```
